```python
import torch

def _softmax(x, axis=-1):
    return torch.softmax(x, dim=axis)
def _gelu(x):
    return torch.nn.functional.gelu(x, approximate="tanh")
def _silu(x):
    return torch.nn.functional.silu(x)
def _sigmoid(x):
    return torch.sigmoid(x)
def _layernorm(x, axis=-1, eps=1e-5):
    m = x.mean(dim=axis, keepdim=True)
    v = x.var(dim=axis, keepdim=True, unbiased=False)
    return (x - m) / torch.sqrt(v + eps)
def _scatter_add(tgt, idx, src, axis=0):
    return tgt.clone().index_add_(axis, idx, src)
def _segment_sum(src, seg, n):
    out = torch.zeros((n,) + src.shape[1:], dtype=src.dtype)
    return out.index_add_(0, seg, src)
def _pad(x, pw):
    flat = tuple(v for pair in reversed(pw) for v in pair)
    return torch.nn.functional.pad(x, flat)

kernel_name = 'concat_heads__gqa_block_cached__mha_block_cached__near_ridge'

def setup_inputs():

    _w = (lambda a: (lambda t: t.to(torch.bfloat16) if t.is_floating_point() else t)(torch.as_tensor(a)))
    def _A_setup():
        B, Sq, D = 8, 176, 448
        Hq, Hkv, Sk, Dh = 16, 8, 2048, 256
        assert Hq % Hkv == 0, (Hq, Hkv)
        return {
            "x": _w((lambda *s: torch.randn(*s, dtype=torch.bfloat16) * 0.8)(B, Sq, D)),
            "k_cache": _w((lambda *s: torch.randn(*s, dtype=torch.bfloat16) * 0.8)(B, Hkv, Sk, Dh)),
            "v_cache": _w((lambda *s: torch.randn(*s, dtype=torch.bfloat16) * 0.05)(B, Hkv, Sk, Dh)),
            "wq": _w((lambda *s: torch.randn(*s, dtype=torch.bfloat16) * 0.8)(D, Hq * Dh) * (D ** -0.5)),
            "wo": _w((lambda *s: torch.randn(*s, dtype=torch.bfloat16) * 0.05)(Hq * Dh, D) * ((Hq * Dh) ** -0.5)),
        }
    _A_in = _A_setup()

    def _B_setup():
        B, Sq, D = 8, 176, 448
        H, Sk, Dh = 16, 2048, 256
        return {
            "x": _w((lambda *s: torch.randn(*s, dtype=torch.bfloat16) * 0.8)(B, Sq, D)),
            "k_cache": _w((lambda *s: torch.randn(*s, dtype=torch.bfloat16) * 0.8)(B, H, Sk, Dh)),
            "v_cache": _w((lambda *s: torch.randn(*s, dtype=torch.bfloat16) * 0.05)(B, H, Sk, Dh)),
            "wq": _w((lambda *s: torch.randn(*s, dtype=torch.bfloat16) * 0.8)(D, H * Dh) * (D ** -0.5)),
            "wo": _w((lambda *s: torch.randn(*s, dtype=torch.bfloat16) * 0.05)(H * Dh, D) * ((H * Dh) ** -0.5)),
        }
    _B_in = _B_setup()

    return {
        "A_x": _A_in["x"],
        "A_k_cache": _A_in["k_cache"],
        "A_v_cache": _A_in["v_cache"],
        "A_wq": _A_in["wq"],
        "A_wo": _A_in["wo"],
        "B_x": _B_in["x"],
        "B_k_cache": _B_in["k_cache"],
        "B_v_cache": _B_in["v_cache"],
        "B_wq": _B_in["wq"],
        "B_wo": _B_in["wo"],
    }

def reference(A_x, A_k_cache, A_v_cache, A_wq, A_wo, B_x, B_k_cache, B_v_cache, B_wq, B_wo):
    def _A_ref(x, k_cache, v_cache, wq, wo):
        B, Sq, D = x.shape
        Hq, Dh = 16, 256
        Hkv = k_cache.shape[1]
        rep = Hq // Hkv
        q = (lambda x, *d: x.permute(*d))((x @ wq).reshape(B, Sq, Hq, Dh), 0, 2, 1, 3)
        k = (lambda x, n, axis: torch.repeat_interleave(x, n, dim=axis))(k_cache, rep, axis=1)
        v = (lambda x, n, axis: torch.repeat_interleave(x, n, dim=axis))(v_cache, rep, axis=1)
        scores = torch.einsum("bhqd,bhkd->bhqk", q, k) * (Dh ** -0.5)
        p = _softmax(scores, axis=-1)
        o = torch.einsum("bhqk,bhkd->bhqd", p, v)
        return (lambda x, *d: x.permute(*d))(o, 0, 2, 1, 3).reshape(B, Sq, Hq * Dh) @ wo

    def _B_ref(x, k_cache, v_cache, wq, wo):
        B, Sq, D = x.shape
        H, Dh = 16, 256
        q = (lambda x, *d: x.permute(*d))((x @ wq).reshape(B, Sq, H, Dh), 0, 2, 1, 3)
        scores = torch.einsum("bhqd,bhkd->bhqk", q, k_cache) * (Dh ** -0.5)
        p = _softmax(scores, axis=-1)
        o = torch.einsum("bhqk,bhkd->bhqd", p, v_cache)
        return (lambda x, *d: x.permute(*d))(o, 0, 2, 1, 3).reshape(B, Sq, H * Dh) @ wo

    a = _A_ref(A_x, A_k_cache, A_v_cache, A_wq, A_wo)
    b = _B_ref(B_x, B_k_cache, B_v_cache, B_wq, B_wo)
    return torch.concatenate([a, b], axis=-1)
```

```python
import math
import struct
import sys

NAME = "concat_heads__gqa_block_cached__mha_block_cached__near_ridge"
K1 = NAME + "_kernel"
K2 = "oproj_kernel"

CFG = dict(
    nt_b=False,
    partA=3,
    stamps=False,
    thr=4096.0,
)


def f32bits(x):
    return struct.unpack("<I", struct.pack("<f", x))[0]


SLOT = 33792
KS = [0, SLOT]
VS = [2 * SLOT, 3 * SLOT]
WOS = 4 * SLOT
LDS1 = WOS + 28672
KP = 1040
VP = 1056
WOFF = 2 * 8 * 11 * 131072
STAMP_OFF = WOFF + 2 * 128 * 28672


class G:
    def __init__(self):
        self.out = []
        self.lg = []
        self.vm = []

    def e(self, s):
        self.out.append("    " + s)

    def lab(self, s):
        self.out.append(s + ":")

    def c(self, s):
        self.out.append("    ; " + s)

    def ds(self, s, tag):
        self.e(s)
        self.lg.append(tag)

    def vmem(self, s, tag):
        self.e(s)
        self.vm.append(tag)
        assert len(self.vm) <= 63, "too many vmem outstanding"

    @staticmethod
    def _need(q, tags, mx):
        idx = -1
        for i, t in enumerate(q):
            if t in tags:
                idx = i
        if idx < 0:
            return None
        n = len(q) - 1 - idx
        return min(n, mx)

    def wait_str(self, lg_tags=(), vm_tags=(), lg0=False, vm0=False):
        parts = []
        n = 0 if (vm0 and self.vm) else self._need(self.vm, set(vm_tags), 63)
        if n is not None:
            parts.append("vmcnt(%d)" % n)
            self.vm = self.vm[len(self.vm) - n:] if n else []
        n = 0 if (lg0 and self.lg) else self._need(self.lg, set(lg_tags), 15)
        if n is not None:
            parts.append("lgkmcnt(%d)" % n)
            self.lg = self.lg[len(self.lg) - n:] if n else []
        if parts:
            return "s_waitcnt " + " ".join(parts)
        return None

    def wait(self, **kw):
        s = self.wait_str(**kw)
        if s:
            self.e(s)


def vr(b, n=1):
    return "v%d" % b if n == 1 else "v[%d:%d]" % (b, b + n - 1)


def ar(b, n=1):
    return "a%d" % b if n == 1 else "a[%d:%d]" % (b, b + n - 1)


def sr(b, n=1):
    return "s%d" % b if n == 1 else "s[%d:%d]" % (b, b + n - 1)


MF = "v_mfma_f32_16x16x32_bf16"

S_X, S_K, S_V, S_WQ, S_WO, S_O, S_W = 44, 48, 52, 56, 60, 64, 68
S_WAVE, S_M0K, S_M0V, S_KO, S_VO, S_CNT, S_THR = 72, 73, 74, 75, 76, 77, 78
S_SC = 80
S_T0, S_T1, S_T2, S_T3 = 82, 83, 84, 85
S_4096, S_XJ1, S_XJ2 = 86, 87, 88
S_M0W = 89
S_ST = 92
S_TS = 96
V_KRD, V_VRD, V_D0, V_D1, V_B16, V_B32, V_LANE = 1, 2, 3, 4, 5, 6, 7
V_L, V_TS, V_TMP = 8, 11, 14
V_NEGM = 16
V_T = 28
V_P1 = 40
V_P0 = [52, 224]
V_Q = 64
V_S = 128
V_X = 236
V_QLO, V_QHI, V_WQD, V_XO, V_WOD, V_WOR, V_OST = 40, 41, 42, 43, 44, 45, 36
V_ACC = 64
A_O = 0
A_RING = 192
A_Q = 224


def Sreg(p, kb, j):
    return V_S + p * 48 + (kb * 3 + j) * 4


def Preg(p, kg, j):
    if kg == 0:
        return V_P0[p] + 4 * j
    return V_P1 + 4 * j


def Qop(j, s):
    f = j * 8 + s
    if f < 16:
        return vr(V_Q + 4 * f, 4)
    return ar(A_Q + 4 * (f - 16), 4)


def Oreg(D, j):
    return A_O + (D * 3 + j) * 4


def Accreg(D, j):
    return V_ACC + (j * 8 + (D >> 1)) * 8 + (D & 1) * 4


def Xreg(j, ks):
    return (ks * 3 + j) * 4


class Frag:
    def __init__(self, tag, reads, mfmas):
        self.tag = tag
        self.reads = reads
        self.mfmas = mfmas


_uid = [0]


def uid():
    _uid[0] += 1
    return _uid[0]


def k_frags(slot, p, first, nq):
    fr = []
    for kb in range(4):
        kg, par = kb >> 1, kb & 1
        for s in range(8):
            off = KS[slot] + kg * 16 * KP + par * 512 + 32 * s

            def reads(buf, off=off):
                return ["ds_read_b128 %s, %s offset:%d" % (ar(A_RING + 4 * buf, 4), vr(V_KRD), off)]

            def mf(buf, kb=kb, s=s):
                r = []
                for j in range(nq):
                    d = vr(Sreg(p, kb, j), 4)
                    cc = d if s else ("0" if first else vr(V_NEGM + 4 * j, 4))
                    r.append("%s %s, %s, %s, %s" % (MF, d, ar(A_RING + 4 * buf, 4), Qop(j, s), cc))
                return r
            fr.append(Frag("f%d" % len(fr), reads, mf))
    return fr


def v_frags(slot, p, first, nq):
    fr = []
    for kg in range(2):
        for D in range(16):
            off = VS[slot] - VS[0] + kg * 16 * VP + 32 * D

            def reads(buf, off=off):
                b = A_RING + 4 * buf
                return ["ds_read_b64_tr_b16 %s, %s offset:%d" % (ar(b, 2), vr(V_VRD), off),
                        "ds_read_b64_tr_b16 %s, %s offset:%d" % (ar(b + 2, 2), vr(V_VRD), off + 512)]

            def mf(buf, kg=kg, D=D):
                r = []
                for j in range(nq):
                    d = ar(Oreg(D, j), 4)
                    cc = "0" if (first and kg == 0) else d
                    r.append("%s %s, %s, %s, %s" % (MF, d, ar(A_RING + 4 * buf, 4), vr(Preg(p, kg, j), 4), cc))
                return r
            fr.append(Frag("f%d" % len(fr), reads, mf))
    return fr


WRING = [KS[1], VS[0], VS[1], KS[0]]


def w_frags(t, nq):
    base = WRING[t & 3]
    va, rel = (V_QLO, base) if base < VS[0] else (V_QHI, base - VS[0])
    fr = []
    for kg in range(2):
        for D in range(16):
            off = rel + kg * 16 * VP + 32 * (D >> 1) + 8 * (D & 1)

            def reads(buf, off=off):
                b = A_RING + 4 * buf
                return ["ds_read_b64_tr_b16 %s, %s offset:%d" % (ar(b, 2), vr(va), off),
                        "ds_read_b64_tr_b16 %s, %s offset:%d" % (ar(b + 2, 2), vr(va), off + 512)]

            def mf(buf, kg=kg, D=D):
                r = []
                for j in range(nq):
                    d = vr(Accreg(D, j), 4)
                    cc = "0" if (t == 0 and kg == 0) else d
                    r.append("%s %s, %s, %s, %s" % (MF, d, ar(A_RING + 4 * buf, 4), ar(Xreg(j, 2 * t + kg), 4), cc))
                return r
            fr.append(Frag("f%d" % len(fr), reads, mf))
    return fr


def kv_dma(kind, slot, tag):
    res = []
    srd, so, m0b, pitch, sb = (S_K, S_KO, S_M0K, KP, KS[slot]) if kind == "K" else (S_V, S_VO, S_M0V, VP, VS[slot])
    nt = " nt" if CFG["nt_b"] else ""
    for u in range(8):
        m0 = sb + u * pitch - (u & 3) * 1024
        res.append((["s_add_u32 m0, %s, 0x%x" % (sr(m0b), m0)],
                    "buffer_load_dwordx4 %s, %s, %s offen offset:%d%s lds" % (
                        vr(V_D0 + (u >> 2)), sr(srd, 4), sr(so), (u & 3) * 1024, nt), tag))
    return res


def wq_dma(t):
    res = []
    for u in range(8):
        so = t * 64 * 8192 + (8 * (u >> 2) + (u & 3)) * 8192
        st = S_T0 + (u & 1)
        res.append((["s_mov_b32 %s, 0x%x" % (sr(st), so),
                     "s_add_u32 m0, %s, 0x%x" % (sr(S_M0V), WRING[t & 3] + u * VP)],
                    "buffer_load_dwordx4 %s, %s, %s offen lds" % (vr(V_WQD), sr(S_WQ, 4), sr(st)), "wq%d" % t))
    return res


def wo_dma():
    res = []
    for u in range(7):
        so = sr(S_4096) if u >= 4 else "0"
        res.append((["s_add_u32 m0, %s, 0x%x" % (sr(S_M0W), WOS + (u >> 2) * 4096)],
                    "buffer_load_dwordx4 %s, %s, %s offen offset:%d lds" % (vr(V_WOD), sr(S_WO, 4), so, (u & 3) * 1024),
                    "wo"))
    return res


def sm_unit(p, kg, j, first_of_tile):
    src = [Sreg(p, 2 * kg, j) + r for r in range(4)] + [Sreg(p, 2 * kg + 1, j) + r for r in range(4)]
    t = [V_T + i for i in range(8)]
    ts = V_TS + j
    P = Preg(p, kg, j)

    def ex(i):
        return ("v_exp_f32 %s, %s" % (vr(t[i]), vr(src[i])), 2)

    def ad(i):
        return ("v_add_f32 %s, %s, %s" % (vr(ts), vr(ts), vr(t[i])), 1)

    def cv(i):
        return ("v_cvt_pk_bf16_f32 %s, %s, %s" % (vr(P + i), vr(t[2 * i]), vr(t[2 * i + 1])), 1)
    if first_of_tile:
        a01 = [("v_add_f32 %s, %s, %s" % (vr(ts), vr(t[0]), vr(t[1])), 1)]
    else:
        a01 = [ad(0), ad(1)]
    return [ex(0), ex(1), ex(2), ex(3)] + a01 + [cv(0), ex(4), ad(2), ex(5), ad(3), cv(1), ex(6), ad(4), ex(7), ad(5),
                                                 cv(2), ad(6), ad(7), cv(3)]


def units(nq):
    return [(kg, j) for kg in range(2) for j in range(nq)]


def partA(p, nq):
    n = CFG["partA"] if nq == 3 else 2
    assert n <= nq
    r = []
    for kg, j in units(nq)[:n]:
        r += sm_unit(p, kg, j, kg == 0)
    return r


def partB(p, nq):
    n = CFG["partA"] if nq == 3 else 2
    r = []
    for kg, j in units(nq)[n:]:
        r += sm_unit(p, kg, j, kg == 0)
    return r


def l_adds(nq):
    return [("v_add_f32 %s, %s, %s" % (vr(V_L + j), vr(V_L + j), vr(V_TS + j)), 1) for j in range(nq)]


BARF = 25
AHEAD = 7


def issue_first(g, frags, ph):
    for i in range(AHEAD):
        for s in frags[i].reads(i % 8):
            g.ds(s, (ph, i))


def phase(g, ph, frags, nxt, nxt_ph, bar_vm, valu=(), dmas=(), tail=(), nq=3, valu_last=None):
    nf = len(frags)
    ngap = nf * nq
    fixed = [[] for _ in range(ngap)]
    for i in range(nf):
        todo = []
        if i + AHEAD < nf:
            todo = [(s, (ph, i + AHEAD)) for s in frags[i + AHEAD].reads((i + AHEAD) % 8)]
        elif nxt is not None and i > BARF:
            k = i + AHEAD - nf
            ks = [k] if i > BARF + 1 else list(range(0, k + 1))
            for kk in ks:
                todo += [(s, (nxt_ph, kk)) for s in nxt[kk].reads(kk % 8)]
        for n, (s, tag) in enumerate(todo):
            gi = i * nq + (n % nq if len(todo) <= nq else min(n // 2, nq - 1))
            fixed[gi].append(("ds", s, tag, 1))
        if i % 2 == 1 and i + 1 < nf:
            fixed[i * nq + nq - 1].append(("w", None, i + 1, 1))
    if nxt is not None:
        fixed[BARF * nq + nq - 1] = [x for x in fixed[BARF * nq + nq - 1] if x[0] != "w"]
        fixed[BARF * nq + nq - 1].append(("bar", None, None, 2))
    nd = len(dmas)
    for n, (pre, ins, tag) in enumerate(dmas):
        fi = (n * BARF) // nd
        if nd <= BARF // 2:
            fi = fi & ~1
        gi = fi * nq + nq - 1
        for s in pre:
            fixed[gi - 1].append(("s", s, None, 1))
        fixed[gi].append(("dma", ins, tag, 2))
    for n, s in enumerate(tail):
        fixed[ngap - 2 - 2 * (len(tail) - 1 - n)].append(("s", s, None, 1))
    last = ngap - 1 if valu_last is None else valu_last
    free = [max(0, 2 - sum(x[3] for x in fixed[k])) if k <= last else 0 for k in range(ngap)]
    F = sum(free)
    C = sum(c for _, c in valu)
    q = list(valu)
    done = 0
    cum = 0
    extra = max(0.0, C - F * 0.92)
    place = [[] for _ in range(ngap)]
    nlast = last + 1
    for k in range(nlast):
        cum += free[k]
        target = C * min(1.0, (cum / F) * 1.04) if F else C
        room = free[k]
        while q and done < target:
            if q[0][1] <= room or (done + 2 < target and room > -1 and extra > 0) or done + 3 < target:
                room -= q[0][1]
                done += q[0][1]
                place[k].append(q.pop(0)[0])
            else:
                break
    while q:
        place[last].append(q.pop(0)[0])
    g.wait(lg_tags=[(ph, 0), (ph, 1)])
    for i in range(nf):
        ms = frags[i].mfmas(i % 8)
        for n, m in enumerate(ms):
            if n == 0:
                g.wait(lg_tags=[(ph, i)])
            g.e(m)
            k = i * nq + n
            fx = fixed[k]
            for kind, s, tag, _ in fx:
                if kind == "s":
                    g.e(s)
                elif kind == "ds":
                    g.ds(s, tag)
            for s in place[k]:
                g.e(s)
            for kind, s, tag, _ in fx:
                if kind == "dma":
                    g.vmem(s, tag)
                elif kind == "w":
                    g.wait(lg_tags=[(ph, tag), (ph, tag + 1)])
                elif kind == "bar":
                    s = g.wait_str(vm_tags=bar_vm, lg0=True)
                    if s:
                        g.e(s)
                    g.e("s_barrier")


def rowmax(g, p, nq, dst):
    for j in range(nq):
        rs = [Sreg(p, kb, j) + r for kb in range(4) for r in range(4)]
        d = vr(dst + j)
        g.e("v_max3_f32 %s, %s, %s, %s" % (d, vr(rs[0]), vr(rs[1]), vr(rs[2])))
        for k in range(3, 15, 2):
            g.e("v_max3_f32 %s, %s, %s, %s" % (d, d, vr(rs[k]), vr(rs[k + 1])))
        g.e("v_max_f32 %s, %s, %s" % (d, d, vr(rs[15])))
    xreduce(g, nq, dst, "v_max_f32")


def xreduce(g, nq, dst, op):
    tmp = V_X + 8
    for a in (V_B16, V_B32):
        for j in range(nq):
            g.e("ds_bpermute_b32 %s, %s, %s" % (vr(tmp + j), vr(a), vr(dst + j)))
        g.e("s_waitcnt lgkmcnt(0)")
        for j in range(nq):
            g.e("%s %s, %s, %s" % (op, vr(dst + j), vr(dst + j), vr(tmp + j)))


def full_softmax(g, p, nq):
    for kg, j in units(nq):
        for s, _ in sm_unit(p, kg, j, kg == 0):
            g.e(s)


def sub_S(g, p, nq, dl):
    for j in range(nq):
        for kb in range(4):
            for r in range(4):
                x = vr(Sreg(p, kb, j) + r)
                g.e("v_sub_f32 %s, %s, %s" % (x, x, vr(dl + j)))


def rare(g, label, back, p, has_next, nq):
    dl = V_X
    sc = V_X + 4
    g.lab(label)
    g.e("s_nop 7")
    rowmax(g, p, nq, dl)
    for j in range(nq):
        g.e("v_max_f32 %s, 0, %s" % (vr(dl + j), vr(dl + j)))
    for j in range(nq):
        g.e("v_exp_f32 %s, -%s" % (vr(sc + j), vr(dl + j)))
    sub_S(g, p, nq, dl)
    if has_next:
        sub_S(g, 1 - p, nq, dl)
    for j in range(nq):
        for r in range(4):
            x = vr(V_NEGM + 4 * j + r)
            g.e("v_sub_f32 %s, %s, %s" % (x, x, vr(dl + j)))
        g.e("v_mul_f32 %s, %s, %s" % (vr(V_L + j), vr(V_L + j), vr(sc + j)))
    for D in range(16):
        for j in range(nq):
            for r in range(4):
                g.e("v_accvgpr_read_b32 %s, %s" % (vr(V_T + r), ar(Oreg(D, j) + r)))
            for r in range(4):
                g.e("v_mul_f32 %s, %s, %s" % (vr(V_T + r), vr(V_T + r), vr(sc + j)))
            for r in range(4):
                g.e("v_accvgpr_write_b32 %s, %s" % (ar(Oreg(D, j) + r), vr(V_T + r)))
    full_softmax(g, p, nq)
    g.e("s_nop 1")
    g.e("s_branch %s" % back)


def check_ops(nq):
    if nq == 3:
        m = "v_max3_f32 %s, %s, %s, %s" % (vr(V_TMP), vr(V_TS), vr(V_TS + 1), vr(V_TS + 2))
    else:
        m = "v_max_f32 %s, %s, %s" % (vr(V_TMP), vr(V_TS), vr(V_TS + 1))
    return [(m, 1), ("v_cmp_nge_f32 vcc, %s, %s" % (sr(S_THR), vr(V_TMP)), 1)]


_stamp = [0]


def stamp(g):
    if not CFG["stamps"]:
        return
    n = _stamp[0]
    _stamp[0] += 1
    g.e("s_memtime %s" % sr(S_TS, 2))
    g.e("s_waitcnt lgkmcnt(0)")
    g.e("v_mov_b32 v15, %s" % sr(S_TS))
    g.vmem("buffer_store_dword v15, v0, %s, 0 offen offset:%d" % (sr(S_ST, 4), n * 4), "st")


def srd(g, d, lo, hi, nrec):
    if lo != d:
        g.e("s_mov_b32 %s, %s" % (sr(d), sr(lo)))
        g.e("s_mov_b32 %s, %s" % (sr(d + 1), sr(hi)))
    if isinstance(nrec, int):
        g.e("s_mov_b32 %s, 0x%x" % (sr(d + 2), nrec))
    else:
        g.e("s_mov_b32 %s, %s" % (sr(d + 2), nrec))
    g.e("s_mov_b32 %s, 0x20000" % sr(d + 3))


def add64(g, d, off):
    g.e("s_add_u32 %s, %s, %s" % (sr(d), sr(d), off))
    g.e("s_addc_u32 %s, %s, 0" % (sr(d + 1), sr(d + 1)))


def kernel1():
    g = G()
    nq = 3
    e = g.e
    g.lab(K1)
    e("s_cmp_ge_u32 s2, 256")
    e("s_cbranch_scc1 L1_END")
    e("s_load_dwordx16 s[16:31], s[0:1], 0")
    e("s_load_dwordx8 s[32:39], s[0:1], 64")
    e("s_load_dwordx2 s[40:41], s[0:1], 96")
    e("s_and_b32 s4, s2, 7")
    e("s_lshr_b32 s5, s2, 3")
    e("s_lshr_b32 s6, s5, 4")
    e("s_xor_b32 s6, s6, 1")
    e("s_bfe_u32 s7, s5, 0x30001")
    e("s_and_b32 s8, s5, 1")
    e("s_lshl_b32 s9, s4, 1")
    e("s_add_u32 s8, s8, s9")
    e("v_and_b32 %s, 63, v0" % vr(V_LANE))
    e("v_lshrrev_b32 v9, 6, v0")
    L = vr(V_LANE)
    e("v_and_b32 v10, 15, %s" % L)
    e("v_readfirstlane_b32 %s, v9" % sr(S_WAVE))
    e("v_lshrrev_b32 v11, 4, %s" % L)
    e("v_lshrrev_b32 v12, 2, %s" % L)
    e("v_and_b32 v13, 3, %s" % L)
    e("v_mul_u32_u24 %s, 0x%x, v10" % (vr(V_KRD), KP))
    e("v_and_b32 v14, 1, v11")
    e("v_lshl_add_u32 %s, v14, 8, %s" % (vr(V_KRD), vr(V_KRD)))
    e("v_lshrrev_b32 v14, 1, v11")
    e("v_lshl_add_u32 %s, v14, 4, %s" % (vr(V_KRD), vr(V_KRD)))
    e("v_mul_u32_u24 v15, 0x%x, v12" % VP)
    e("v_lshl_add_u32 %s, v13, 3, v15" % vr(V_VRD))
    e("v_add_u32 %s, 0x%x, %s" % (vr(V_VRD), VS[0], vr(V_VRD)))
    e("v_and_b32 v14, 1, v13")
    e("v_lshl_add_u32 %s, v14, 8, v15" % vr(V_QLO))
    e("v_lshrrev_b32 v14, 1, v13")
    e("v_lshl_add_u32 %s, v14, 4, %s" % (vr(V_QLO), vr(V_QLO)))
    e("v_add_u32 %s, 0x%x, %s" % (vr(V_QHI), VS[0], vr(V_QLO)))
    e("v_lshlrev_b32 v14, 4, %s" % L)
    e("v_lshl_add_u32 %s, v9, 13, v14" % vr(V_D0))
    e("v_add_u32 %s, 0x1000, %s" % (vr(V_D1), vr(V_D0)))
    e("v_mul_u32_u24 v15, 0x1c00, v9")
    e("v_add_u32 %s, v15, v14" % vr(V_WOD))
    e("v_mul_u32_u24 v15, 0x60000, v9")
    e("v_add_u32 %s, v15, v14" % vr(V_OST))
    e("v_and_b32 v14, 31, %s" % L)
    e("v_lshlrev_b32 v14, 4, v14")
    e("v_lshl_add_u32 v14, v9, 17, v14")
    e("v_lshrrev_b32 v15, 5, %s" % L)
    e("v_lshl_add_u32 %s, v15, 15, v14" % vr(V_WQD))
    e("v_mul_u32_u24 v14, 48, v9")
    e("v_add_u32 v14, v14, v10")
    e("v_mul_u32_u24 v14, 0x380, v14")
    e("v_lshl_add_u32 %s, v11, 4, v14" % vr(V_XO))
    e("v_mul_u32_u24 v14, 0x380, v12")
    e("v_lshl_add_u32 v14, v13, 3, v14")
    e("v_mul_u32_u24 v15, 0xe0, v9")
    e("v_add_u32 v14, v14, v15")
    e("v_add_u32 %s, 0x%x, v14" % (vr(V_WOR), WOS))
    e("v_xor_b32 v14, 16, %s" % L)
    e("v_lshlrev_b32 %s, 2, v14" % vr(V_B16))
    e("v_xor_b32 v14, 32, %s" % L)
    e("v_lshlrev_b32 %s, 2, v14" % vr(V_B32))
    e("s_mul_i32 %s, %s, %d" % (sr(S_M0K), sr(S_WAVE), 8 * KP))
    e("s_mul_i32 %s, %s, %d" % (sr(S_M0V), sr(S_WAVE), 8 * VP))
    e("s_mul_i32 %s, %s, %d" % (sr(S_M0W), sr(S_WAVE), 7 * 1024))
    e("s_mov_b32 %s, 0x1000" % sr(S_4096))
    e("s_mov_b32 %s, %d" % (sr(S_XJ1), 16 * 896))
    e("s_mov_b32 %s, %d" % (sr(S_XJ2), 32 * 896))
    e("s_mov_b32 %s, 0x%x" % (sr(S_THR), f32bits(CFG["thr"])))
    e("s_mov_b32 %s, 0x%x" % (sr(S_SC), f32bits(math.log2(math.e) / 16)))
    e("s_mov_b32 %s, %s" % (sr(S_SC + 1), sr(S_SC)))
    e("s_lshl_b32 s10, s7, 3")
    e("s_add_u32 s10, s10, s4")
    e("s_lshl_b32 s11, s7, 4")
    e("s_add_u32 s11, s11, s8")
    e("s_cmp_eq_u32 s6, 1")
    e("s_cselect_b32 s10, s11, s10")
    e("s_lshl_b32 s10, s10, 20")
    e("s_waitcnt lgkmcnt(0)")
    e("s_cmp_eq_u32 s6, 1")
    e("s_cselect_b64 %s, s[26:27], s[16:17]" % sr(S_X, 2))
    e("s_cselect_b64 %s, s[28:29], s[18:19]" % sr(S_K, 2))
    e("s_cselect_b64 %s, s[30:31], s[20:21]" % sr(S_V, 2))
    e("s_cselect_b64 %s, s[32:33], s[22:23]" % sr(S_WQ, 2))
    e("s_cselect_b64 %s, s[34:35], s[24:25]" % sr(S_WO, 2))
    e("s_lshl_b32 s11, s8, 9")
    add64(g, S_WQ, "s11")
    e("s_sub_u32 s12, 0x%x, s11" % (448 * 8192))
    srd(g, S_WQ, S_WQ, S_WQ + 1, "s12")
    e("s_mul_i32 s11, s7, %d" % 157696)
    add64(g, S_X, "s11")
    srd(g, S_X, S_X, S_X + 1, 157696)
    for pre, ins, tag in wq_dma(0):
        for s in pre:
            e(s)
        e("s_nop 0")
        g.vmem(ins, tag)

    def xload(ks):
        for j in range(nq):
            so = ["0", sr(S_XJ1), sr(S_XJ2)][j]
            g.vmem("buffer_load_dwordx4 %s, %s, %s, %s offen offset:%d" % (
                ar(Xreg(j, ks), 4), vr(V_XO), sr(S_X, 4), so, 64 * ks), "x%d" % (ks >> 1))
    for ks in range(4):
        xload(ks)
    for pre, ins, tag in wq_dma(1):
        for s in pre:
            e(s)
        e("s_nop 0")
        g.vmem(ins, tag)
    for ks in range(4, 14):
        xload(ks)
    add64(g, S_K, "s10")
    srd(g, S_K, S_K, S_K + 1, 1 << 20)
    add64(g, S_V, "s10")
    srd(g, S_V, S_V, S_V + 1, 1 << 20)
    e("s_lshl_b32 s11, s8, 3")
    e("s_add_u32 s11, s11, s7")
    e("s_mul_i32 s12, s11, 28672")
    add64(g, S_WO, "s12")
    srd(g, S_WO, S_WO, S_WO + 1, 28672)
    e("s_mul_i32 s13, s6, %d" % (128 * 28672))
    e("s_add_u32 s12, s12, s13")
    e("s_add_u32 s12, s12, 0x%x" % WOFF)
    e("s_add_u32 %s, s40, s12" % sr(S_W))
    e("s_addc_u32 %s, s41, 0" % sr(S_W + 1))
    srd(g, S_W, S_W, S_W + 1, 28672)
    e("s_lshl_b32 s11, s6, 3")
    e("s_add_u32 s11, s11, s7")
    e("s_mul_i32 s11, s11, %d" % (11 * 131072))
    e("s_lshl_b32 s12, s8, 13")
    e("s_add_u32 s11, s11, s12")
    e("s_add_u32 %s, s40, s11" % sr(S_O))
    e("s_addc_u32 %s, s41, 0" % sr(S_O + 1))
    e("s_sub_u32 s12, 0x%x, s12" % (11 * 131072))
    srd(g, S_O, S_O, S_O + 1, "s12")
    if CFG["stamps"]:
        e("s_lshl_b32 s11, s2, 2")
        e("s_add_u32 s11, s11, %s" % sr(S_WAVE))
        e("s_lshl_b32 s11, s11, 8")
        e("s_add_u32 s11, s11, 0x%x" % STAMP_OFF)
        e("s_add_u32 %s, s40, s11" % sr(S_ST))
        e("s_addc_u32 %s, s41, 0" % sr(S_ST + 1))
        srd(g, S_ST, S_ST, S_ST + 1, 256)
        e("v_lshlrev_b32 v0, 8, %s" % L)
    stamp(g)
    g.wait(vm_tags=["wq0", "x0"])
    e("s_barrier")
    stamp(g)
    W = [w_frags(t, nq) for t in range(7)]
    QK0 = k_frags(0, 0, True, nq)
    issue_first(g, W[0], "W0")
    e("s_mov_b32 %s, 0" % sr(S_KO))
    e("s_mov_b32 %s, 0" % sr(S_VO))
    adv = lambda r: "s_add_u32 %s, %s, 0x8000" % (sr(r), sr(r))
    wd = [wq_dma(2) + wq_dma(3), wq_dma(4) + wo_dma(), wq_dma(5), wq_dma(6),
          kv_dma("K", 0, "K0"), kv_dma("K", 1, "K1"), kv_dma("V", 0, "V0")]
    wt = [(), (), (), (), [adv(S_KO)], [adv(S_KO)], [adv(S_VO)]]
    for t in range(7):
        g.c("Q-proj tile %d" % t)
        if t < 6:
            phase(g, "W%d" % t, W[t], W[t + 1], "W%d" % (t + 1), ["wq%d" % (t + 1), "x%d" % (t + 1)],
                  dmas=wd[t], tail=wt[t], nq=nq)
        else:
            phase(g, "W6", W[6], QK0, "Q0", ["K0", "wo"], dmas=wd[t], tail=wt[t], nq=nq)
    stamp(g)
    for u in range(7):
        g.ds("ds_read_b64_tr_b16 %s, %s offset:%d" % (ar(4 * u, 2), vr(V_WOR), 32 * u), "wor")
        g.ds("ds_read_b64_tr_b16 %s, %s offset:%d" % (ar(4 * u + 2, 2), vr(V_WOR), 32 * u + 16 * 896), "wor")
    for f in range(8 * nq):
        a = V_ACC + 8 * f
        for k in range(4):
            e("v_pk_mul_f32 %s, %s, %s" % (vr(a + 2 * k, 2), vr(a + 2 * k, 2), sr(S_SC, 2)))
        for k in range(4):
            d = V_Q + 4 * f + k if f < 16 else a + k
            e("v_cvt_pk_bf16_f32 %s, %s, %s" % (vr(d), vr(a + 2 * k), vr(a + 2 * k + 1)))
        if f >= 16:
            for k in range(4):
                e("v_accvgpr_write_b32 %s, %s" % (ar(A_Q + 4 * (f - 16) + k), vr(a + k)))
        if f == 2:
            g.wait(lg_tags=["wor"])
            for u in range(7):
                so = sr(S_4096) if u >= 4 else "0"
                g.vmem("buffer_store_dwordx4 %s, %s, %s, %s offen offset:%d" % (
                    ar(4 * u, 4), vr(V_WOD), sr(S_W, 4), so, (u & 3) * 1024), "wost")
    e("s_nop 1")
    stamp(g)
    g.c("QK(0)")
    QK1 = k_frags(1, 1, False, nq)
    phase(g, "Q0", QK0, QK1, "Q1", ["K1"], dmas=kv_dma("V", 1, "V1"), tail=[adv(S_VO)], nq=nq)
    g.c("softmax(0)")
    e("s_nop 7")
    dl = V_X
    rowmax(g, 0, nq, dl)
    g.lg = []
    sub_S(g, 0, nq, dl)
    for j in range(nq):
        for r in range(4):
            e("v_sub_f32 %s, 0, %s" % (vr(V_NEGM + 4 * j + r), vr(dl + j)))
        e("v_mov_b32 %s, 0" % vr(V_L + j))
    full_softmax(g, 0, nq)
    stamp(g)
    g.c("QK(1)")
    PV0 = v_frags(0, 0, True, nq)
    phase(g, "Q1", QK1, PV0, "P0", ["V0"], dmas=kv_dma("K", 0, "K0"), tail=[adv(S_KO)], nq=nq)
    g.c("PV(0)")
    QKe = k_frags(0, 0, False, nq)
    QKo = k_frags(1, 1, False, nq)
    PVe = v_frags(0, 0, False, nq)
    PVo = v_frags(1, 1, False, nq)
    phase(g, "P0", PV0, QKe, "Qe", ["K0"], valu=l_adds(nq) + partA(1, nq), dmas=kv_dma("K", 1, "K1"),
          tail=[adv(S_KO), "s_mov_b32 %s, 15" % sr(S_CNT)], nq=nq)
    stamp(g)
    g.vm = ["V1"] * 8 + ["K1"] * 8
    head_vm, head_lg = list(g.vm), list(g.lg)
    g.out.append(".p2align 6")
    g.lab("L1_LOOP")
    phase(g, "Qe", QKe, PVo, "Po", ["V1"], valu=partB(1, nq) + check_ops(nq), dmas=kv_dma("V", 0, "V0"),
          tail=[adv(S_VO)], nq=nq, valu_last=32 * nq - 2)
    e("s_cbranch_vccnz L1_RARE1")
    g.lab("L1_BACK1")
    phase(g, "Po", PVo, QKo, "Qo", ["K1"], valu=l_adds(nq) + partA(0, nq), dmas=kv_dma("K", 0, "K0"),
          tail=[adv(S_KO)], nq=nq)
    phase(g, "Qo", QKo, PVe, "Pe", ["V0"], valu=partB(0, nq) + check_ops(nq), dmas=kv_dma("V", 1, "V1"),
          tail=[adv(S_VO)], nq=nq, valu_last=32 * nq - 2)
    e("s_cbranch_vccnz L1_RARE0")
    g.lab("L1_BACK0")
    phase(g, "Pe", PVe, QKe, "Qe", ["K0"], valu=l_adds(nq) + partA(1, nq), dmas=kv_dma("K", 1, "K1"),
          tail=[adv(S_KO), "s_sub_u32 %s, %s, 1" % (sr(S_CNT), sr(S_CNT)), "s_cmp_lg_u32 %s, 0" % sr(S_CNT)], nq=nq)
    e("s_cbranch_scc1 L1_LOOP")
    assert g.vm == head_vm, (g.vm, head_vm)
    assert g.lg == head_lg, (g.lg, head_lg)
    stamp(g)
    g.c("tail: tile 31")
    g.wait(vm_tags=["V1"], lg0=True)
    e("s_barrier")
    issue_first(g, PVo, "Pz")
    for s, _ in partB(1, nq) + check_ops(nq):
        e(s)
    e("s_cbranch_vccnz L1_RARE2")
    g.lab("L1_BACK2")
    phase(g, "Pz", PVo, None, None, [], valu=l_adds(nq), nq=nq)
    stamp(g)
    g.c("epilogue")
    xreduce(g, nq, V_L, "v_add_f32")
    g.lg = []
    for j in range(nq):
        e("v_rcp_f32 %s, %s" % (vr(V_X + 2 * j), vr(V_L + j)))
    e("s_nop 0")
    for j in range(nq):
        e("v_mov_b32 %s, %s" % (vr(V_X + 2 * j + 1), vr(V_X + 2 * j)))
    n = 0
    for j in range(nq):
        for m in range(8):
            t = 128 + 8 * (n % 8)
            o = 64 + 4 * (n % 8)
            n += 1
            if m % 4 == 0:
                e("s_mov_b32 %s, 0x%x" % (sr(S_T0), j * 131072 + (m >> 2) * 4096))
            for hh in range(2):
                for r in range(4):
                    e("v_accvgpr_read_b32 %s, %s" % (vr(t + 4 * hh + r), ar(Oreg(2 * m + hh, j) + r)))
            for k in range(4):
                e("v_pk_mul_f32 %s, %s, %s" % (vr(t + 2 * k, 2), vr(t + 2 * k, 2), vr(V_X + 2 * j, 2)))
            for k in range(4):
                e("v_cvt_pk_bf16_f32 %s, %s, %s" % (vr(o + k), vr(t + 2 * k), vr(t + 2 * k + 1)))
            if len(g.vm) > 40:
                g.vm = g.vm[-20:]
                e("s_waitcnt vmcnt(20)")
            g.vmem("buffer_store_dwordx4 %s, %s, %s, %s offen offset:%d" % (
                vr(o, 4), vr(V_OST), sr(S_O, 4), sr(S_T0), (m & 3) * 1024), "ost")
    stamp(g)
    g.lab("L1_END")
    e("s_endpgm")
    rare(g, "L1_RARE1", "L1_BACK1", 1, True, nq)
    rare(g, "L1_RARE0", "L1_BACK0", 0, True, nq)
    rare(g, "L1_RARE2", "L1_BACK2", 1, False, nq)
    return g.out


LDS2 = 4 * 20 * 1024


def kernel2():
    g = G()
    e = g.e
    SO, SW, SOUT = 8, 12, 16
    DEPTH = 4
    g.lab(K2)
    e("s_cmp_ge_u32 s2, 256")
    e("s_cbranch_scc1 L2_END")
    e("s_and_b32 s4, s2, 7")
    e("s_lshl_b32 s4, s4, 5")
    e("s_lshr_b32 s5, s2, 3")
    e("s_add_u32 s4, s4, s5")
    e("s_cmp_ge_u32 s4, 252")
    e("s_cbranch_scc1 L2_END")
    e("s_load_dwordx2 s[20:21], s[0:1], 80")
    e("s_load_dwordx2 s[22:23], s[0:1], 96")
    e("s_mul_i32 s5, s4, 9363")
    e("s_lshr_b32 s5, s5, 16")
    e("s_mul_i32 s6, s5, 7")
    e("s_sub_u32 s6, s4, s6")
    e("s_cmp_ge_u32 s5, 18")
    e("s_cselect_b32 s7, 1, 0")
    e("s_mul_i32 s24, s7, 18")
    e("s_sub_u32 s5, s5, s24")
    e("v_and_b32 v1, 63, v0")
    e("v_lshrrev_b32 v2, 6, v0")
    e("v_lshlrev_b32 v3, 4, v1")
    e("v_lshl_add_u32 v4, v2, 15, v3")
    for j in range(1, 5):
        e("v_add_u32 v%d, 0x20000, v%d" % (4 + j, 3 + j))
    e("v_mul_u32_u24 v9, 0x%x, v2" % (32 * 28672))
    e("v_add_u32 v9, v9, v3")
    e("s_mul_i32 s24, s7, 88")
    e("s_mul_i32 s25, s5, 5")
    e("s_add_u32 s24, s24, s25")
    e("s_lshl_b32 s24, s24, 17")
    e("s_sub_u32 s26, 88, s25")
    e("s_lshl_b32 s26, s26, 17")
    e("s_mul_i32 s27, s7, %d" % (128 * 28672))
    e("s_lshl_b32 s28, s6, 12")
    e("s_add_u32 s27, s27, s28")
    e("s_add_u32 s27, s27, 0x%x" % WOFF)
    e("s_sub_u32 s28, %d, s28" % (128 * 28672))
    e("s_waitcnt lgkmcnt(0)")
    e("s_add_u32 s%d, s22, s24" % SO)
    e("s_addc_u32 s%d, s23, 0" % (SO + 1))
    srd(g, SO, SO, SO + 1, "s26")
    e("s_add_u32 s%d, s22, s27" % SW)
    e("s_addc_u32 s%d, s23, 0" % (SW + 1))
    srd(g, SW, SW, SW + 1, "s28")
    e("s_mov_b32 s30, 0")
    e("s_mov_b32 s31, 0")
    ACC = 16
    RING = 96

    def loads(buf):
        b = RING + 36 * buf
        r = []
        for E in range(4):
            r.append("buffer_load_dwordx4 %s, v9, %s, s31 offen offset:%d" % (vr(b + 4 * E, 4), sr(SW, 4), E * 1024))
        for j in range(5):
            r.append("buffer_load_dwordx4 %s, v%d, %s, s30 offen" % (vr(b + 16 + 4 * j, 4), 4 + j, sr(SO, 4)))
        return r
    advs = ["s_add_u32 s30, s30, 0x400", "s_add_u32 s31, s31, 28672"]
    for d in range(DEPTH):
        for s in loads(d):
            g.vmem(s, d)
        for s in advs:
            e(s)
    e("s_mul_i32 s24, s25, %d" % (16 * 1792))
    e("s_mul_i32 s26, s7, 896")
    e("s_add_u32 s24, s24, s26")
    e("s_lshl_b32 s26, s6, 7")
    e("s_add_u32 s24, s24, s26")
    e("s_add_u32 s%d, s20, s24" % SOUT)
    e("s_addc_u32 s%d, s21, 0" % (SOUT + 1))
    e("s_sub_u32 s26, %d, s24" % (1408 * 1792))
    srd(g, SOUT, SOUT, SOUT + 1, "s26")
    e("v_and_b32 v10, 15, v1")
    e("v_mul_u32_u24 v10, 0x700, v10")
    e("v_lshl_add_u32 v10, v2, 5, v10")
    e("v_lshrrev_b32 v11, 4, v1")
    e("v_lshl_add_u32 v10, v11, 3, v10")
    e("v_mul_u32_u24 v11, 0x5000, v2")
    e("v_add_u32 v11, v11, v3")
    e("v_mul_u32_u24 v12, 0x1400, v2")
    e("v_add_u32 v12, v12, v3")
    e("v_add_u32 v13, 0xa000, v12")
    for r in range(80):
        e("v_mov_b32 v%d, 0" % (ACC + r))
    e("s_mov_b32 s29, 7")

    def step(buf, pre):
        b = RING + 36 * buf
        g.wait(vm_tags=[buf])
        for E in range(4):
            for j in range(5):
                d = vr(ACC + 4 * (E * 5 + j), 4)
                e("%s %s, %s, %s, %s" % (MF, d, vr(b + 4 * E, 4), vr(b + 16 + 4 * j, 4), d))
        if pre:
            for s in loads(buf):
                g.vmem(s, buf)
            for s in advs:
                e(s)
    head = list(g.vm)
    g.out.append(".p2align 6")
    g.lab("L2_LOOP")
    for d in range(DEPTH):
        step(d, True)
    e("s_sub_u32 s29, s29, 1")
    e("s_cmp_lg_u32 s29, 0")
    e("s_cbranch_scc1 L2_LOOP")
    assert g.vm == head
    for d in range(DEPTH):
        step(d, False)
    e("s_nop 7")
    for blk in range(20):
        e("ds_write_b128 v11, %s offset:%d" % (vr(ACC + 4 * blk, 4), blk * 1024))
    e("s_waitcnt lgkmcnt(0)")
    e("s_barrier")
    for j in range(5):
        for w in range(4):
            e("ds_read_b128 %s, v%d offset:%d" % (vr(RING + 16 * j + 4 * w, 4), 12 + (w >> 1), (w & 1) * 20480 + j * 1024))
        if j == 2:
            e("s_waitcnt lgkmcnt(0)")
    e("s_waitcnt lgkmcnt(0)")
    for j in range(5):
        b = RING + 16 * j
        for r in range(4):
            e("v_add_f32 v%d, v%d, v%d" % (b + r, b + r, b + 4 + r))
            e("v_add_f32 v%d, v%d, v%d" % (b + 8 + r, b + 8 + r, b + 12 + r))
        for r in range(4):
            e("v_add_f32 v%d, v%d, v%d" % (b + r, b + r, b + 8 + r))
        e("v_cvt_pk_bf16_f32 v%d, v%d, v%d" % (b + 4, b, b + 1))
        e("v_cvt_pk_bf16_f32 v%d, v%d, v%d" % (b + 5, b + 2, b + 3))
        e("s_mov_b32 s30, %d" % (j * 16 * 1792))
        e("buffer_store_dwordx2 %s, v10, %s, s30 offen" % (vr(b + 4, 2), sr(SOUT, 4)))
    g.lab("L2_END")
    e("s_endpgm")
    return g.out


def desc(name, nv, acc):
    return [".p2align 6", ".amdhsa_kernel " + name,
            "  .amdhsa_next_free_vgpr %d" % nv,
            "  .amdhsa_next_free_sgpr 102",
            "  .amdhsa_accum_offset %d" % acc,
            "  .amdhsa_group_segment_fixed_size 0",
            "  .amdhsa_kernarg_size 104",
            "  .amdhsa_user_sgpr_count 2",
            "  .amdhsa_user_sgpr_kernarg_segment_ptr 1",
            "  .amdhsa_system_sgpr_workgroup_id_x 1",
            ".end_amdhsa_kernel"]


def build():
    ref = open("cdna_kernels/%s.s.ref" % NAME).read().split("\n")
    head = []
    for ln in ref:
        if ln.startswith("; Override") or ln.startswith("; grid=") or ln.startswith("; @launch"):
            continue
        if not ln.startswith(";"):
            break
        head.append(ln)
    out = head + [
        "; @launch kernel=%s grid=(256,1,1) block=(256,1,1) lds=%d" % (K1, LDS1),
        "; @launch kernel=%s grid=(256,1,1) block=(256,1,1) lds=%d" % (K2, LDS2),
        '.amdgcn_target "amdgcn-amd-amdhsa--gfx950"', ".text"]
    for name, body in ((K1, kernel1()), (K2, kernel2())):
        out += [".globl " + name, ".p2align 8", ".type %s,@function" % name] + body
    out += ['.section .rodata,"a"'] + desc(K1, 512, 256) + desc(K2, 240, 240)
    return "\n".join(out) + "\n"


if __name__ == "__main__":
    path = "cdna_kernels/%s.s" % NAME
    for a in sys.argv[1:]:
        if "=" in a:
            k, v = a.split("=")
            CFG[k] = type(CFG[k])(eval(v))
        else:
            path = a
    open(path, "w").write(build())
    print("wrote", path)
```

```python
import re


def regs(tok):
    tok = tok.strip().lstrip('-')
    m = re.fullmatch(r'([vas])\[(\d+):(\d+)\]', tok)
    if m:
        return {(m.group(1), i) for i in range(int(m.group(2)), int(m.group(3)) + 1)}
    m = re.fullmatch(r'([vas])(\d+)', tok)
    if m:
        return {(m.group(1), int(m.group(2)))}
    if tok in ('vcc', 'm0', 'exec'):
        return {(tok, 0)}
    return set()


TRANS = ('v_exp_', 'v_log_', 'v_rcp_', 'v_rsq_', 'v_sqrt_', 'v_sin_', 'v_cos_')


def parse(line):
    line = line.split(';')[0].strip()
    if not line or line.endswith(':') or line.startswith('.'):
        return None
    op, _, rest = line.partition(' ')
    ops = [x.strip() for x in rest.split(',')] if rest else []
    if ops:
        last = ops[-1].split()
        mods = last[1:]
        ops[-1] = last[0] if last else ''
    else:
        mods = []
    d = dict(op=op, text=line, w=set(), r=set(), c=set(), ab=set(), data=set(), n=1)
    if op.startswith('v_mfma'):
        d['k'] = 'mfma'
        d['w'] = regs(ops[0])
        d['ab'] = regs(ops[1]) | regs(ops[2])
        d['c'] = regs(ops[3])
        d['r'] = d['ab'] | d['c']
    elif op.startswith('v_'):
        d['k'] = 'valu'
        d['w'] = regs(ops[0])
        for o in ops[1:]:
            d['r'] |= regs(o)
        d['trans'] = op.startswith(TRANS)
        if op.startswith('v_cndmask') and len(ops) == 3:
            d['r'] |= {('vcc', 0)}
        if op.startswith('v_permlane'):
            d['w'] |= d['r']
            d['r'] = set(d['w'])
    elif op.startswith('buffer_') or op.startswith('global_'):
        d['k'] = 'vmem'
        lds = 'lds' in mods
        d['lds'] = lds
        if lds:
            d['r'] |= {('m0', 0)}
        if 'load' in op and not lds:
            d['w'] = regs(ops[0])
            for o in ops[1:]:
                d['r'] |= regs(o)
        else:
            for o in ops:
                d['r'] |= regs(o)
            if 'store' in op and ('x4' in op or 'x3' in op):
                d['data'] = regs(ops[0])
    elif op.startswith('ds_'):
        d['k'] = 'ds'
        if 'read' in op or 'permute' in op:
            d['w'] = regs(ops[0])
            for o in ops[1:]:
                d['r'] |= regs(o)
        else:
            for o in ops:
                d['r'] |= regs(o)
    elif op == 's_nop':
        d['k'] = 'nop'
        d['n'] = int(ops[0]) + 1
    else:
        d['k'] = 'salu'
        if ops and not op.startswith(('s_cmp', 's_cbranch', 's_branch', 's_waitcnt')):
            d['w'] = regs(ops[0])
            for o in ops[1:]:
                d['r'] |= regs(o)
        elif op.startswith('s_cmp'):
            for o in ops:
                d['r'] |= regs(o)
    return d


def need(p, c):
    n = 0
    pk, ck = p['k'], c['k']
    if pk == 'valu':
        vw = {x for x in p['w'] if x[0] in 'va'}
        sw = p['w'] - vw
        if ck == 'mfma' and vw & c['r']:
            n = max(n, 2)
        if p.get('trans') and ck == 'valu' and vw & c['r']:
            n = max(n, 1)
        if ck == 'valu' and sw & c['r']:
            n = max(n, 2)
        if ck == 'vmem' and sw & c['r']:
            n = max(n, 5)
        if ck == 'valu' and c['op'].startswith(('v_readfirstlane', 'v_readlane')) and vw & c['r']:
            n = max(n, 1)
        if ck == 'valu' and c['op'].startswith('v_permlane') and vw & (c['r'] | c['w']):
            n = max(n, 2)
    if pk == 'mfma':
        if ck == 'mfma':
            if p['w'] & c['ab']:
                n = max(n, 8)
            if p['w'] & c['c'] and p['w'] != c['c']:
                n = max(n, 6)
            if p['w'] & c['w'] and p['w'] != c['c']:
                n = max(n, 8)
        elif ck in ('valu', 'vmem', 'ds'):
            if p['w'] & (c['r'] | c['w']):
                n = max(n, 8)
            if ck == 'valu' and p['c'] & c['w']:
                n = max(n, 3)
    if pk == 'salu' and ('m0', 0) in p['w'] and ck == 'vmem' and c.get('lds'):
        n = max(n, 1)
    if pk == 'vmem' and p['data'] & c['w']:
        n = max(n, 2)
    return n


def short(hist, c):
    dist = 0
    miss = 0
    for p in reversed(hist[-12:]):
        miss = max(miss, need(p, c) - dist)
        dist += p['n']
        if dist >= 10:
            break
    return miss
```

```python
import math
import struct
import sys
from hzlib import parse, need, short

NAME = "concat_heads__gqa_block_cached__mha_block_cached__near_ridge"
K1 = NAME + "_kernel"
K2 = "hsum_kernel"

CFG = dict(
    stamps=False,
    thr=4096.0,
    w3=True,
    kvpol="nt",
    stpol="sc0_sc1",
    k3pol="",
    splitA=72,
    scost=0,
    dcost=2,
    wfirst=True,
    barg=12,
    boff=2,
    dmaend=16,
    nodmai=False,
    nolg0=False,
    verbose=False,
    estamps=False,
    wstamps=False,
    nost=False,
    nowo=False,
    stsame=False,
    pf0=0,
    pf1=0,
    pfc=1,
    pfw=1,
    pfq=0,
    wqpol="nt",
    xpol="",
    wopol="",
    pfpol="",
    pcpol="",
    pfl=0,
    pfwat=1,
    pfl2=0,
    w5end=15,
    mz=4,
)


def f32bits(x):
    return struct.unpack("<I", struct.pack("<f", x))[0]


def pol(k):
    return (" " + CFG[k].replace("_", " ")) if CFG[k] else ""


SLOT = 33792
KS = [0, SLOT]
VS = [2 * SLOT, 3 * SLOT]
LDS1 = 163840
KP = 1040
VP = 1056
ER = [0, 32768, 65536, 98304, 131072, 0, 32768]
POFF = 64 << 20
STAMP_OFF = 30408704
GRP = 11 * 14 * 16384


class G:
    def __init__(self):
        self.out = []
        self.lg = []
        self.vm = []
        self.hist = []
        self.where = ""
        self.nops = {}

    def e(self, s):
        d = parse(s)
        m = short(self.hist, d)
        if m > 0:
            t = "s_nop %d" % (m - 1)
            self.out.append(" " + t)
            self.hist.append(parse(t))
            self.nops[self.where] = self.nops.get(self.where, 0) + m
        self.out.append(" " + s)
        self.hist.append(d)
        self.hist = self.hist[-16:]

    def lab(self, s):
        self.out.append(s + ":")

    def c(self, s):
        self.out.append(" ; " + s)
        self.where = s

    def ds(self, s, tag):
        self.e(s)
        self.lg.append(tag)

    def vmem(self, s, tag):
        self.e(s)
        self.vm.append(tag)
        assert len(self.vm) <= 63, "too many vmem outstanding"

    @staticmethod
    def _need(q, tags, mx):
        idx = -1
        for i, t in enumerate(q):
            if t in tags:
                idx = i
        if idx < 0:
            return None
        return min(len(q) - 1 - idx, mx)

    def wait(self, lg_tags=(), vm_tags=(), lg0=False, vm0=False):
        parts = []
        n = 0 if (vm0 and self.vm) else self._need(self.vm, set(vm_tags), 63)
        if n is not None:
            parts.append("vmcnt(%d)" % n)
            self.vm = self.vm[len(self.vm) - n:] if n else []
        n = 0 if (lg0 and self.lg) else self._need(self.lg, set(lg_tags), 15)
        if n is not None:
            parts.append("lgkmcnt(%d)" % n)
            self.lg = self.lg[len(self.lg) - n:] if n else []
        if parts:
            self.e("s_waitcnt " + " ".join(parts))


def vr(b, n=1):
    return "v%d" % b if n == 1 else "v[%d:%d]" % (b, b + n - 1)


def ar(b, n=1):
    return "a%d" % b if n == 1 else "a[%d:%d]" % (b, b + n - 1)


def sr(b, n=1):
    return "s%d" % b if n == 1 else "s[%d:%d]" % (b, b + n - 1)


MF = "v_mfma_f32_16x16x32_bf16"

S_X, S_K, S_V, S_WQ, S_WO, S_P = 44, 48, 52, 56, 60, 64
S_WAVE, S_M0K, S_M0V, S_KO, S_VO, S_CNT, S_THR = 72, 73, 74, 75, 76, 77, 78
S_SC = 80
S_T0, S_T1, S_T2, S_T3 = 82, 83, 84, 85
S_XJ1, S_XJ2 = 87, 88
S_M0E = 89
S_RET = 90
S_ST = 92
S_TS = 96
V_KRD, V_VRD, V_D0, V_D1, V_OST, V_WOD, V_LANE = 1, 2, 3, 4, 5, 6, 7
V_L, V_TS, V_TMP = 8, 11, 14
V_NEGM = 16
V_T = 28
V_ELO = 36
V_P1 = 40
V_P0 = [52, 224]
V_P1Z = 160
V_Q = 64
V_S = 128
V_X = 236
V_EHI = 236
V_EH2 = 24
V_PK0 = 40
V_OS1 = 240
V_QLO, V_QHI, V_WQD, V_XO = 40, 41, 42, 43
V_ACC = 64
V_B = 64
EACC = [[176 + 4 * i for i in range(12)],
        [160, 164, 168, 172, 224, 228, 232, 244, 248, 252, 16, 20]]
A_O = 0
A_RING = 192
A_Q = 224


def Sreg(p, kb, j):
    return V_S + p * 48 + (kb * 3 + j) * 4


def Preg(p, kg, j, z=False):
    if kg == 0:
        return V_P0[p] + 4 * j
    return (V_P1Z if z else V_P1) + 4 * j


def Qop(j, s):
    f = j * 8 + s
    if f < 16:
        return vr(V_Q + 4 * f, 4)
    return ar(A_Q + 4 * (f - 16), 4)


def Oreg(D, j):
    return A_O + (D * 3 + j) * 4


def Accreg(D, j):
    return V_ACC + (j * 8 + (D >> 1)) * 8 + (D & 1) * 4


def Xreg(j, ks):
    return (ks * 3 + j) * 4


def Breg(m, j):
    return V_B + (m * 3 + j) * 4


def ring(k, f):
    return A_RING + 8 * (k & 3) + 4 * f


def tr2(b, va, off, second):
    return ["ds_read_b64_tr_b16 %s, %s offset:%d" % (ar(b, 2), vr(va), off),
            "ds_read_b64_tr_b16 %s, %s offset:%d" % (ar(b + 2, 2), vr(va), off + second)]


def k_groups(slot, p, nq, zero_kb=()):
    gr = []
    for kb in range(4):
        kg, par = kb >> 1, kb & 1
        for sp in range(4):
            k = len(gr)
            rd, mf = [], []
            for f in range(2):
                off = KS[slot] + kg * 16 * KP + par * 512 + 32 * (2 * sp + f)
                rd.append("ds_read_b128 %s, %s offset:%d" % (ar(ring(k, f), 4), vr(V_KRD), off))
            for j in range(nq):
                for f in range(2):
                    s = 2 * sp + f
                    d = vr(Sreg(p, kb, j), 4)
                    cc = d if s else ("0" if kb in zero_kb else vr(V_NEGM + 4 * j, 4))
                    mf.append("%s %s, %s, %s, %s" % (MF, d, ar(ring(k, f), 4), Qop(j, s), cc))
            gr.append((rd, mf))
    return gr


def v_groups(slot, p, nq, first=False, z=False):
    gr = []
    for D in range(16):
        rd, mf = [], []
        for kg in range(2):
            rd += tr2(ring(D, kg), V_VRD, VS[slot] - VS[0] + kg * 16 * VP + 32 * D, 512)
        for j in range(nq):
            for kg in range(2):
                d = ar(Oreg(D, j), 4)
                cc = "0" if (first and kg == 0) else d
                mf.append("%s %s, %s, %s, %s" % (MF, d, ar(ring(D, kg), 4), vr(Preg(p, kg, j, z), 4), cc))
        gr.append((rd, mf))
    return gr


WRING = [KS[1], VS[0], VS[1], KS[0]]


def w_groups(t, nq):
    base = WRING[t & 3]
    va, rel = (V_QLO, base) if base < VS[0] else (V_QHI, base - VS[0])
    gr = []
    for D in range(16):
        rd, mf = [], []
        for kg in range(2):
            rd += tr2(ring(D, kg), va, rel + kg * 16 * VP + 32 * (D >> 1) + 8 * (D & 1), 512)
        for j in range(nq):
            for kg in range(2):
                d = vr(Accreg(D, j), 4)
                cc = "0" if (t == 0 and kg == 0) else d
                mf.append("%s %s, %s, %s, %s" % (MF, d, ar(ring(D, kg), 4), ar(Xreg(j, 2 * t + kg), 4), cc))
        gr.append((rd, mf))
    return gr


def e_order(c):
    if c == 0:
        return [(E, mp) for mp in range(4) for E in range(4)]
    return [(E, mp) for E in range(4) for mp in range(4)]


def e_groups(c, nq):
    va, rel = [V_ELO, V_EHI, V_EH2][ER[c] >> 16], ER[c] & 0xffff
    gr = []
    for E, mp in e_order(c):
        k = len(gr)
        rd, mf = [], []
        for f in range(2):
            rd += tr2(ring(k, f), va + E, rel + (2 * mp + f) * 4096, 2048)
        for j in range(nq):
            for f in range(2):
                m = 2 * mp + f
                d = vr(EACC[c & 1][E * 3 + j], 4)
                mf.append("%s %s, %s, %s, %s" % (MF, d, ar(ring(k, f), 4), vr(Breg(m, j), 4), d if m else "0"))
        gr.append((rd, mf))
    return gr


def kv_dma(kind, slot, tag):
    res = []
    srd_, so, m0b, pitch, sb = (S_K, S_KO, S_M0K, KP, KS[slot]) if kind == "K" else (S_V, S_VO, S_M0V, VP, VS[slot])
    for u in range(8):
        m0 = sb + u * pitch - (u & 3) * 1024
        res.append((["s_add_u32 m0, %s, 0x%x" % (sr(m0b), m0)],
                    "buffer_load_dwordx4 %s, %s, %s offen offset:%d%s lds" % (
                        vr(V_D0 + (u >> 2)), sr(srd_, 4), sr(so), (u & 3) * 1024, pol("kvpol")), tag))
    return res


def wq_dma(t):
    res = []
    for u in range(8):
        so = t * 64 * 8192 + (8 * (u >> 2) + (u & 3)) * 8192
        st = S_T0 + (u & 1)
        res.append((["s_mov_b32 %s, 0x%x" % (sr(st), so),
                     "s_add_u32 m0, %s, 0x%x" % (sr(S_M0V), WRING[t & 3] + u * VP)],
                    "buffer_load_dwordx4 %s, %s, %s offen%s lds" % (vr(V_WQD), sr(S_WQ, 4), sr(st), pol("wqpol")), "wq%d" % t))
    return res


def wo_dma(c):
    res = []
    for u in range(8):
        st = S_T0 + (u & 1)
        res.append((["s_mov_b32 %s, 0x%x" % (sr(st), c * 128 + u * 7168),
                     "s_add_u32 m0, %s, 0x%x" % (sr(S_M0E), ER[c] + u * 1024)],
                    "buffer_load_dwordx4 %s, %s, %s offen%s lds" % (vr(V_WOD), sr(S_WO, 4), sr(st), pol("wopol")), "c%d" % c))
    return res


def x_loads(t, nq):
    res = []
    for ks in (2 * t, 2 * t + 1):
        for j in range(nq):
            so = ["0", sr(S_XJ1), sr(S_XJ2)][j]
            res.append(([], "buffer_load_dwordx4 %s, %s, %s, %s offen offset:%d%s" % (
                ar(Xreg(j, ks), 4), vr(V_XO), sr(S_X, 4), so, 64 * ks, pol("xpol")), "x%d" % t))
    return res


class F:
    def __init__(self, text, cost=1, lo=0, hi=None, tag=None):
        self.text, self.cost, self.lo, self.hi, self.tag = text, cost, lo, hi, tag


def sm_unit(p, kg, j, z=False):
    src = [Sreg(p, 2 * kg, j) + r for r in range(4)] + [Sreg(p, 2 * kg + 1, j) + r for r in range(4)]
    t = [V_T + i for i in range(8)]
    ts = V_TS + j
    P = Preg(p, kg, j, z)

    def ex(i):
        return F("v_exp_f32 %s, %s" % (vr(t[i]), vr(src[i])), 2)

    def ad(i):
        return F("v_add_f32 %s, %s, %s" % (vr(ts), vr(ts), vr(t[i])))

    def cv(i):
        return F("v_cvt_pk_bf16_f32 %s, %s, %s" % (vr(P + i), vr(t[2 * i]), vr(t[2 * i + 1])))
    if kg == 0:
        a01 = [F("v_add_f32 %s, %s, %s" % (vr(ts), vr(t[0]), vr(t[1])))]
    else:
        a01 = [ad(0), ad(1)]
    return [ex(0), ex(1), ex(2), ex(3)] + a01 + [cv(0), ex(4), ad(2), ex(5), ad(3), cv(1), ex(6), ad(4), ex(7), ad(5),
                                                 cv(2), ad(6), ad(7), cv(3)]


def sm_all(p, nq, z=False):
    r = []
    for kg in range(2):
        for j in range(nq):
            r += sm_unit(p, kg, j, z)
    return r


def sm_split(p, nq):
    a = sm_all(p, nq)
    lim = min(CFG["splitA"] * nq // 3, 27 * nq)
    c = n = 0
    while c + a[n].cost <= lim:
        c += a[n].cost
        n += 1
    return a[:n], a[n:]


def l_adds(nq):
    return [F("v_add_f32 %s, %s, %s" % (vr(V_L + j), vr(V_L + j), vr(V_TS + j))) for j in range(nq)]


def check_ops(nq):
    if nq == 3:
        m = "v_max3_f32 %s, %s, %s, %s" % (vr(V_TMP), vr(V_TS), vr(V_TS + 1), vr(V_TS + 2))
    else:
        m = "v_max_f32 %s, %s, %s" % (vr(V_TMP), vr(V_TS), vr(V_TS + 1))
    return [F(m), F("v_cmp_nge_f32 vcc, %s, %s" % (sr(S_THR), vr(V_TMP)))]


def xlane(d, u, op):
    r = []
    for sw in ("v_permlane32_swap_b32", "v_permlane16_swap_b32"):
        r += ["v_mov_b32 %s, %s" % (vr(u), vr(d)), "%s %s, %s" % (sw, vr(d), vr(u)),
              "%s %s, %s, %s" % (op, vr(d), vr(d), vr(u))]
    return r


def interleave(lists):
    r = []
    for n in range(max(len(x) for x in lists)):
        for x in lists:
            if n < len(x):
                r.append(x[n])
    return r


def sched(fill, free, greedy=False, win=14):
    n = len(free)
    P = [parse(f.text) for f in fill]
    N = len(fill)
    deps = [[] for _ in range(N)]
    for i in range(N):
        for j in range(i):
            if (P[j]['w'] & (P[i]['r'] | P[i]['w'])) or (P[j]['r'] & P[i]['w']) or (
                    P[i]['k'] == 'vmem' and P[j]['k'] == 'vmem'):
                deps[i].append((j, need(P[j], P[i])))
    hi = [min(n - 1, f.hi) if f.hi is not None else n - 1 for f in fill]
    for i in range(N - 1, -1, -1):
        for j, w in deps[i]:
            hi[j] = min(hi[j], hi[i] - w)
    gap = [None] * N
    place = [[] for _ in range(n)]
    left = list(range(N))
    carry = 0.0
    credit = 0.0
    suf = [0] * (n + 1)
    for k in range(n - 1, -1, -1):
        suf[k] = suf[k + 1] + free[k]

    def ready(i, k):
        return fill[i].lo <= k and all(gap[j] is not None and gap[j] + w <= k for j, w in deps[i])

    for k in range(n):
        frac = extra = 0.0
        for d in sorted(set(hi[i] for i in left)):
            nd = sum(fill[i].cost for i in left if hi[i] <= d)
            cap = suf[k] - suf[max(d, k) + 1]
            frac = max(frac, nd / cap if cap else 9.0)
            extra = max(extra, (nd - cap * 0.97) / (max(d, k) - k + 1))
        carry += max(0.0, extra)
        add = int(carry + 1e-9)
        carry -= add
        room = free[k] + add
        credit += (room if greedy else min(1.0, frac * 1.06) * free[k] + add)
        credit = min(credit, 3.0)
        while left:
            order = sorted(left, key=lambda i: (hi[i], i))[:win]
            urgent = [i for i in order if hi[i] <= k and all(gap[j] is not None for j, _ in deps[i])]
            pick = None
            if urgent:
                pick = urgent[0]
            else:
                cand = [i for i in order if ready(i, k) and fill[i].cost <= room and (fill[i].cost == 0 or credit >= 0.75)]
                if cand:
                    big = [i for i in cand if fill[i].cost >= 2]
                    zero = [i for i in cand if fill[i].cost == 0]
                    pick = zero[0] if zero else (big[0] if big else cand[0])
            if pick is None:
                break
            gap[pick] = k
            place[k].append(fill[pick])
            left.remove(pick)
            room -= fill[pick].cost
            credit -= fill[pick].cost
    assert not left
    return place


def issue_first(g, grp, ph):
    for k in range(3):
        for s in grp[k][0]:
            g.ds(s, (ph, k))


def phase(g, ph, grp, nxt, nxt_ph, bar_vm, nq, fill=(), dmas=(), tail=(), greedy=False, dmaend=None, nodma=False,
          dense=False):
    g.c("phase " + ph)
    gpg = 2 * nq
    ngap = 16 * gpg
    BG = CFG["barg"]
    sc = CFG["scost"]
    fixed = [[] for _ in range(ngap)]
    X = BG * gpg + gpg - 1 + CFG["boff"] * nq // 3
    for k in range(16):
        if k + 3 < 16:
            todo = [(s, (ph, k + 3)) for s in grp[k + 3][0]]
            for n, (s, tag) in enumerate(todo):
                step = 2 if (len(todo) == 2 and k != BG) else 1
                fixed[k * gpg + n * step].append(("ds", s, tag, 1))
        if k + 1 < 16:
            if nxt is None or k * gpg + gpg - 1 < X:
                fixed[k * gpg + gpg - 1].append(("w", None, (ph, k + 1), sc))
        elif nxt is not None:
            fixed[k * gpg + gpg - 1].append(("w", None, (nxt_ph, 0), sc))
    if nxt is not None:
        fixed[X].append(("bar", None, None, 2))
        x = X + 1
        for k in range(3):
            x = max(x, (13 + k) * gpg)
            for s in nxt[k][0]:
                fixed[min(x, ngap - 1)].append(("ds", s, (nxt_ph, k), 1))
                x += 1
    nd = len(dmas)
    de = (CFG["dmaend"] if dmaend is None else dmaend) * gpg
    used = set()
    for n, (pre, ins, tag) in enumerate(dmas):
        gi = 1 + (n * (de - 2)) // nd
        while gi in used or any(y[0] in ("ds", "bar") for y in fixed[gi]) and nq == 3 and nd <= 16 and not dense:
            gi += 1
        used.add(gi)
        for s in pre:
            fixed[gi - 1].append(("s", s, None, sc))
        fixed[gi].append(("dma", ins, tag, CFG["dcost"]))
    assert max(used, default=0) < ngap - 2 * len(tail)
    for n, s in enumerate(tail):
        fixed[ngap - 1 - (len(tail) - 1 - n)].append(("s", s, None, sc))
    free = [max(0, 2 - sum(x[3] for x in fixed[k])) for k in range(ngap)]
    place = sched(list(fill), free, greedy)
    if CFG["verbose"]:
        load = [sum(x[3] for x in fixed[k]) + sum(f.cost for f in place[k]) for k in range(ngap)]
        print("%-4s nq%d free %3d fill %3d over %3d  %s" % (ph, nq, sum(free), sum(f.cost for f in fill),
              sum(max(0, x - 2) for x in load), "".join(str(min(x, 9)) for x in load)))
    g.wait(lg_tags=[(ph, 0)])
    for k in range(16):
        for n, m in enumerate(grp[k][1]):
            g.e(m)
            x = k * gpg + n
            fx = fixed[x]
            dmapre = [y for y in fx if y[0] == "s"]
            hasdma = any(y[0] == "dma" for y in fx)
            if CFG["wfirst"]:
                for kind, s, tag, _ in fx:
                    if kind == "w":
                        g.wait(lg_tags=[tag])
            if not hasdma:
                for y in dmapre:
                    g.e(y[1])
            for kind, s, tag, _ in fx:
                if kind == "dma":
                    if nodma:
                        g.vm.append(tag)
                    else:
                        g.vmem(s, tag)
            if hasdma:
                for y in dmapre:
                    g.e(y[1])
            for kind, s, tag, _ in fx:
                if kind == "ds":
                    g.ds(s, tag)
            for f in place[x]:
                if f.tag and CFG["nost"]:
                    g.vm.append(f.tag)
                elif f.tag:
                    g.vmem(f.text, f.tag)
                else:
                    g.e(f.text)
            for kind, s, tag, _ in fx:
                if kind == "w" and not CFG["wfirst"]:
                    g.wait(lg_tags=[tag])
                elif kind == "bar":
                    g.wait(vm_tags=bar_vm, lg0=True)
                    g.e("s_barrier")


def rowmax(g, p, nq, dst):
    for j in range(nq):
        rs = [Sreg(p, kb, j) + r for kb in range(4) for r in range(4)]
        d = vr(dst + j)
        g.e("v_max3_f32 %s, %s, %s, %s" % (d, vr(rs[0]), vr(rs[1]), vr(rs[2])))
        for k in range(3, 15, 2):
            g.e("v_max3_f32 %s, %s, %s, %s" % (d, d, vr(rs[k]), vr(rs[k + 1])))
        g.e("v_max_f32 %s, %s, %s" % (d, d, vr(rs[15])))
    for s in interleave([xlane(dst + j, V_X + 8 + j, "v_max_f32") for j in range(nq)]):
        g.e(s)


def sub_S(g, p, nq, dl):
    for j in range(nq):
        for kb in range(4):
            for r in range(4):
                x = vr(Sreg(p, kb, j) + r)
                g.e("v_sub_f32 %s, %s, %s" % (x, x, vr(dl + j)))


def rare(g, sx, nq, backs):
    dl = V_X
    sc = V_X + 4
    for p in range(2):
        g.lab("L1_RARE%d%s" % (p, sx))
        g.c("rare %d" % p)
        g.e("s_nop 7")
        rowmax(g, p, nq, dl)
        if p == 0:
            g.e("s_branch L1_RESC" + sx)
    g.lab("L1_RESC" + sx)
    for j in range(nq):
        g.e("v_max_f32 %s, 0, %s" % (vr(dl + j), vr(dl + j)))
    for j in range(nq):
        g.e("v_exp_f32 %s, -%s" % (vr(sc + j), vr(dl + j)))
    sub_S(g, 0, nq, dl)
    sub_S(g, 1, nq, dl)
    for j in range(nq):
        for r in range(4):
            x = vr(V_NEGM + 4 * j + r)
            g.e("v_sub_f32 %s, %s, %s" % (x, x, vr(dl + j)))
        g.e("v_mul_f32 %s, %s, %s" % (vr(V_L + j), vr(V_L + j), vr(sc + j)))
    for D in range(16):
        for j in range(nq):
            for r in range(4):
                g.e("v_accvgpr_read_b32 %s, %s" % (vr(V_T + r), ar(Oreg(D, j) + r)))
            for r in range(4):
                g.e("v_mul_f32 %s, %s, %s" % (vr(V_T + r), vr(V_T + r), vr(sc + j)))
            for r in range(4):
                g.e("v_accvgpr_write_b32 %s, %s" % (ar(Oreg(D, j) + r), vr(V_T + r)))
    kinds = sorted(set((p, z) for _, _, p, z in backs))
    for n, (p, z) in enumerate(kinds[1:]):
        for rid, lab, pp, zz in backs:
            if (pp, zz) == (p, z):
                g.e("s_cmp_eq_u32 %s, %d" % (sr(S_RET), rid))
                g.e("s_cbranch_scc1 L1_POST%d%s" % (n + 1, sx))
    for n, (p, z) in enumerate(kinds):
        g.lab("L1_POST%d%s" % (n, sx))
        for f in sm_all(p, nq, z):
            g.e(f.text)
        mine = [(rid, lab) for rid, lab, pp, zz in backs if (pp, zz) == (p, z)]
        for rid, lab in mine[:-1]:
            g.e("s_cmp_eq_u32 %s, %d" % (sr(S_RET), rid))
            g.e("s_cbranch_scc1 %s" % lab)
        g.e("s_nop 1")
        g.e("s_branch %s" % mine[-1][1])


def stamp(g, early=False):
    if not CFG["stamps"]:
        return
    if not early:
        g.e("s_memtime %s" % sr(S_TS, 2))
        g.e("s_memrealtime %s" % sr(S_TS + 2, 2))
    g.e("s_waitcnt lgkmcnt(0)")
    g.e("v_mov_b32 v14, %s" % sr(S_TS))
    g.e("v_mov_b32 v15, %s" % sr(S_TS + 2))
    g.vmem("buffer_store_dwordx2 v[14:15], v0, %s, s91 offen" % (sr(S_ST, 4)), "st")
    g.e("s_add_u32 s91, s91, 8")


def srd(g, d, nrec):
    if isinstance(nrec, int):
        g.e("s_mov_b32 %s, 0x%x" % (sr(d + 2), nrec))
    else:
        g.e("s_mov_b32 %s, %s" % (sr(d + 2), nrec))
    g.e("s_mov_b32 %s, 0x20000" % sr(d + 3))


def add64(g, d, off):
    g.e("s_add_u32 %s, %s, %s" % (sr(d), sr(d), off))
    g.e("s_addc_u32 %s, %s, 0" % (sr(d + 1), sr(d + 1)))


def issue(g, pieces):
    for pre, ins, tag in pieces:
        for s in pre:
            g.e(s)
        g.vmem(ins, tag)


def code_pf(g, n, step, vidx, va, vd, end, uid):
    e = g.e
    e("s_getpc_b64 s[68:69]")
    g.lab("L1_PC" + uid)
    for k in range(n):
        e("v_lshlrev_b32 %s, 7, %s" % (vr(va + 2 * k), vidx))
        if k:
            e("v_add_u32 %s, 0x%x, %s" % (vr(va + 2 * k), k * step, vr(va + 2 * k)))
        e("v_min_u32 %s, %s-L1_PC%s-4, %s" % (vr(va + 2 * k), end, uid, vr(va + 2 * k)))
        e("v_mov_b32 %s, s69" % vr(va + 2 * k + 1))
        e("v_add_co_u32 %s, vcc, s68, %s" % (vr(va + 2 * k), vr(va + 2 * k)))
        e("v_addc_co_u32 %s, vcc, 0, %s, vcc" % (vr(va + 2 * k + 1), vr(va + 2 * k + 1)))
        g.vmem("global_load_dword %s, %s, off" % (vr(vd + k), vr(va + 2 * k, 2)), "pf")


def kernel1():
    g = G()
    e = g.e
    g.lab(K1)
    if CFG["stamps"]:
        e("s_memtime s[96:97]")
        e("s_memrealtime s[98:99]")
    e("s_cmp_ge_u32 s2, 256")
    e("s_cbranch_scc1 L1_END")
    e("s_load_dwordx16 s[16:31], s[0:1], 0")
    e("s_load_dwordx8 s[32:39], s[0:1], 64")
    e("s_load_dwordx2 s[40:41], s[0:1], 96")
    e("s_and_b32 s4, s2, 7")
    e("s_lshr_b32 s5, s2, 3")
    if CFG["pfc"]:
        e("s_getpc_b64 s[68:69]")
        g.lab("L1_PC")
        e("s_lshl_b32 s6, s5, 12")
        e("v_lshl_add_u32 v56, v0, 4, s6")
        e("v_min_u32 v56, L2_END-L1_PC-16, v56")
        e("v_mov_b32 v57, s69")
        e("v_add_co_u32 v56, vcc, s68, v56")
        e("v_addc_co_u32 v57, vcc, 0, v57, vcc")
        g.vmem("global_load_dwordx4 v[52:55], v[56:57], off" + pol("pcpol"), "pf")
    e("s_lshr_b32 s6, s5, 4")
    e("s_xor_b32 s6, s6, 1")
    e("s_bfe_u32 s7, s5, 0x30001")
    e("s_and_b32 s8, s5, 1")
    e("s_lshl_b32 s9, s4, 1")
    e("s_add_u32 s8, s8, s9")
    L = vr(V_LANE)
    e("v_and_b32 %s, 63, v0" % L)
    e("v_lshrrev_b32 v9, 6, v0")
    e("v_and_b32 v10, 15, %s" % L)
    e("v_readfirstlane_b32 %s, v9" % sr(S_WAVE))
    e("v_lshrrev_b32 v11, 4, %s" % L)
    e("v_and_b32 v14, 31, %s" % L)
    e("v_lshlrev_b32 v14, 4, v14")
    e("v_lshl_add_u32 v14, v9, 17, v14")
    e("v_lshrrev_b32 v15, 5, %s" % L)
    e("v_lshl_add_u32 %s, v15, 15, v14" % vr(V_WQD))
    e("v_mul_u32_u24 v14, 48, v9")
    e("v_add_u32 v14, v14, v10")
    e("v_mul_u32_u24 v14, 0x380, v14")
    e("v_lshl_add_u32 %s, v11, 4, v14" % vr(V_XO))
    e("s_mul_i32 %s, %s, %d" % (sr(S_M0V), sr(S_WAVE), 8 * VP))
    e("s_mov_b32 %s, %d" % (sr(S_XJ1), 16 * 896))
    e("s_mov_b32 %s, %d" % (sr(S_XJ2), 32 * 896))
    e("s_lshl_b32 s11, s8, 9")
    e("s_sub_u32 s12, 0x%x, s11" % (448 * 8192))
    e("s_mul_i32 s13, s7, %d" % 157696)
    e("s_waitcnt lgkmcnt(0)")
    e("s_cmp_eq_u32 s6, 1")
    e("s_cselect_b64 %s, s[32:33], s[22:23]" % sr(S_WQ, 2))
    e("s_cselect_b64 %s, s[26:27], s[16:17]" % sr(S_X, 2))
    e("s_cselect_b64 %s, s[28:29], s[18:19]" % sr(S_K, 2))
    e("s_cselect_b64 %s, s[30:31], s[20:21]" % sr(S_V, 2))
    e("s_cselect_b64 %s, s[34:35], s[24:25]" % sr(S_WO, 2))
    add64(g, S_WQ, "s11")
    srd(g, S_WQ, "s12")
    add64(g, S_X, "s13")
    srd(g, S_X, 157696)
    issue(g, wq_dma(0) + x_loads(0, 3) + wq_dma(1) + x_loads(1, 3))
    if CFG["pfq"]:
        e("v_lshrrev_b32 v58, 2, v0")
        e("v_lshlrev_b32 v58, 16, v58")
        e("v_and_b32 v59, 3, v0")
        e("v_lshl_add_u32 v58, v59, 7, v58")
        e("s_lshl_b32 s11, s7, 13")
        e("v_and_b32 v59, 31, v0")
        e("v_mul_u32_u24 v60, 24, v9")
        e("v_add_u32 v59, v59, v60")
        e("v_mul_u32_u24 v59, 0x700, v59")
        e("v_lshl_add_u32 v59, v15, 7, v59")
        e("s_and_b32 s12, s5, 1")
        e("s_mul_i32 s12, s12, 896")
        for k in range(CFG["pfq"]):
            g.vmem("buffer_load_dword v61, v59, %s, s12 offen offset:%d" % (sr(S_X, 4), 256 + 64 * k) + pol("xpol"), "pf")
            g.vmem("buffer_load_dword v61, v58, %s, s11 offen offset:%d" % (sr(S_WQ, 4), 64 * k) + pol("wqpol"), "pf")
        for n in range(1, 3):
            for k in range(CFG["pfq"]):
                g.vmem("buffer_load_dword v61, v59, %s, s12 offen offset:%d" % (sr(S_X, 4), 256 + 256 * n + 64 * k) + pol("xpol"), "pf")
    if CFG["pf0"]:
        code_pf(g, CFG["pf0"], 32768, "v0", 56, 52, "L2_END", "0")
    e("v_lshrrev_b32 v12, 2, %s" % L)
    e("v_and_b32 v13, 3, %s" % L)
    e("v_mul_u32_u24 %s, 0x%x, v10" % (vr(V_KRD), KP))
    e("v_and_b32 v14, 1, v11")
    e("v_lshl_add_u32 %s, v14, 8, %s" % (vr(V_KRD), vr(V_KRD)))
    e("v_lshrrev_b32 v14, 1, v11")
    e("v_lshl_add_u32 %s, v14, 4, %s" % (vr(V_KRD), vr(V_KRD)))
    e("v_mul_u32_u24 v15, 0x%x, v12" % VP)
    e("v_lshl_add_u32 %s, v13, 3, v15" % vr(V_VRD))
    e("v_add_u32 %s, 0x%x, %s" % (vr(V_VRD), VS[0], vr(V_VRD)))
    e("v_and_b32 v14, 1, v13")
    e("v_lshl_add_u32 %s, v14, 8, v15" % vr(V_QLO))
    e("v_lshrrev_b32 v14, 1, v13")
    e("v_lshl_add_u32 %s, v14, 4, %s" % (vr(V_QLO), vr(V_QLO)))
    e("v_add_u32 %s, 0x%x, %s" % (vr(V_QHI), VS[0], vr(V_QLO)))
    e("v_lshlrev_b32 v14, 4, %s" % L)
    e("v_lshl_add_u32 %s, v9, 13, v14" % vr(V_D0))
    e("v_add_u32 %s, 0x1000, %s" % (vr(V_D1), vr(V_D0)))
    e("v_mul_u32_u24 v15, 0x%x, v9" % (3 * 14 * 16384))
    e("v_add_u32 %s, v15, v14" % vr(V_OST))
    e("v_lshrrev_b32 v14, 3, %s" % L)
    e("v_lshl_add_u32 v15, v9, 6, v14")
    e("v_mul_u32_u24 v15, 0x380, v15")
    e("v_and_b32 v14, 6, v14")
    e("v_and_b32 v16, 7, %s" % L)
    e("v_xor_b32 v14, v14, v16")
    e("v_lshl_add_u32 %s, v14, 4, v15" % vr(V_WOD))
    e("v_lshlrev_b32 v14, 7, v12")
    e("v_lshl_add_u32 v14, v13, 3, v14")
    e("v_bfe_u32 v15, v12, 1, 2")
    for E in range(4):
        e("v_xor_b32 v16, %d, v15" % E)
        e("v_lshl_add_u32 %s, v16, 5, v14" % vr(V_ELO + E))
    e("s_mul_i32 %s, %s, %d" % (sr(S_M0K), sr(S_WAVE), 8 * KP))
    e("s_lshl_b32 %s, %s, 13" % (sr(S_M0E), sr(S_WAVE)))
    e("s_mov_b32 %s, 0x%x" % (sr(S_THR), f32bits(CFG["thr"])))
    e("s_mov_b32 %s, 0x%x" % (sr(S_SC), f32bits(math.log2(math.e) / 16)))
    e("s_mov_b32 %s, %s" % (sr(S_SC + 1), sr(S_SC)))
    e("s_lshl_b32 s10, s7, 3")
    e("s_add_u32 s10, s10, s4")
    e("s_lshl_b32 s11, s7, 4")
    e("s_add_u32 s11, s11, s8")
    e("s_cmp_eq_u32 s6, 1")
    e("s_cselect_b32 s10, s11, s10")
    e("s_lshl_b32 s10, s10, 20")
    add64(g, S_K, "s10")
    srd(g, S_K, 1 << 20)
    add64(g, S_V, "s10")
    srd(g, S_V, 1 << 20)
    e("s_mul_i32 s12, s8, %d" % (256 * 896))
    add64(g, S_WO, "s12")
    srd(g, S_WO, 256 * 896)
    e("s_lshl_b32 s11, s6, 3")
    e("s_add_u32 s11, s11, s7")
    e("s_mul_i32 s11, s11, %d" % GRP)
    e("s_lshl_b32 s12, s8, 10")
    e("s_add_u32 s11, s11, s12")
    e("s_add_u32 s11, s11, 0x%x" % POFF)
    e("s_add_u32 %s, s40, s11" % sr(S_P))
    e("s_addc_u32 %s, s41, 0" % sr(S_P + 1))
    e("s_sub_u32 s12, %d, s12" % GRP)
    srd(g, S_P, "s12")
    if CFG["pfw"] or CFG["pfl"]:
        e("s_mul_i32 s70, s7, 28672")
        e("s_mul_i32 s11, %s, 7168" % sr(S_WAVE))
        e("s_add_u32 s70, s70, s11")
    e("s_mov_b32 %s, 0" % sr(S_KO))
    e("s_mov_b32 %s, 0" % sr(S_VO))
    if CFG["stamps"]:
        e("s_lshl_b32 s11, s2, 2")
        e("s_add_u32 s11, s11, %s" % sr(S_WAVE))
        e("s_lshl_b32 s11, s11, 8")
        e("s_add_u32 s11, s11, 0x%x" % STAMP_OFF)
        e("s_add_u32 %s, s40, s11" % sr(S_ST))
        e("s_addc_u32 %s, s41, 0" % sr(S_ST + 1))
        srd(g, S_ST, 256)
        e("v_lshlrev_b32 v0, 8, %s" % L)
        e("s_mov_b32 s91, 0")
        stamp(g, True)
    g.wait(vm_tags=["wq0", "x0"])
    e("s_barrier")
    stamp(g)
    if CFG["w3"]:
        e("s_cmp_eq_u32 %s, 3" % sr(S_WAVE))
        e("s_cbranch_scc1 L1_W3")
        st = (list(g.vm), list(g.lg))
        body1(g, 3, "")
        g.vm, g.lg = st
        g.out.append(".p2align 6")
        g.lab("L1_W3")
        body1(g, 2, "_W3")
    else:
        body1(g, 3, "")
    if CFG["verbose"]:
        print("nops", g.nops)
    return g.out


def body1(g, nq, sx):
    e = g.e
    gpg = 2 * nq
    W = [w_groups(t, nq) for t in range(7)]
    QK0 = k_groups(0, 0, nq, zero_kb=(0, 1))
    issue_first(g, W[0], "W0")

    def adv(r):
        return "s_add_u32 %s, %s, 0x8000" % (sr(r), sr(r))
    wd = [wq_dma(2) + x_loads(2, nq) + wq_dma(3), x_loads(3, nq) + wq_dma(4), x_loads(4, nq) + wq_dma(5),
          x_loads(5, nq) + wq_dma(6), x_loads(6, nq) + kv_dma("K", 0, "K0"), kv_dma("K", 1, "K1"),
          kv_dma("V", 0, "V0")]
    if CFG["pfwat"] >= 2:
        pw = [(["v_lshlrev_b32 v44, 7, %s" % vr(V_LANE)] if k == 0 else [],
               "buffer_load_dword a191, v44, %s, s70 offen offset:%d" % (sr(S_WO, 4), 64 * k) + pol("pfpol"), "pf")
              for k in range(CFG["pfw"])]
        t = CFG["pfwat"] // 2
        wd[t] = wd[t] + pw if CFG["pfwat"] & 1 else pw + wd[t]
    wt = [(), (), (), (), [adv(S_KO)], [adv(S_KO)], [adv(S_VO)]]
    for t in range(7):
        if t < 6:
            phase(g, "W%d" % t, W[t], W[t + 1], "W%d" % (t + 1), ["wq%d" % (t + 1), "x%d" % (t + 1)], nq,
                  dmas=wd[t], tail=wt[t], dmaend=CFG["w5end"] if t == 5 else 15)
            if CFG["wstamps"]:
                stamp(g)
        else:
            phase(g, "W6", W[6], QK0, "Q0", ["K0"], nq, dmas=wd[t], tail=wt[t], dmaend=15)
    stamp(g)
    g.c("convert Q")
    for f in range(8 * nq):
        a = V_ACC + 8 * f
        for k in range(4):
            e("v_pk_mul_f32 %s, %s, %s" % (vr(a + 2 * k, 2), vr(a + 2 * k, 2), sr(S_SC, 2)))
        for k in range(4):
            d = V_Q + 4 * f + k if f < 16 else a + k
            e("v_cvt_pk_bf16_f32 %s, %s, %s" % (vr(d), vr(a + 2 * k), vr(a + 2 * k + 1)))
        if f >= 16:
            for k in range(4):
                e("v_accvgpr_write_b32 %s, %s" % (ar(A_Q + 4 * (f - 16) + k), vr(a + k)))
    stamp(g)
    QKe = k_groups(0, 0, nq)
    QKo = k_groups(1, 1, nq)
    PVe = v_groups(0, 0, nq)
    PVo = v_groups(1, 1, nq)
    A0, B0 = sm_split(0, nq)
    A1, B1 = sm_split(1, nq)
    ref = []
    for j in range(nq):
        t, u = V_X + 2 * j, V_X + 2 * j + 1
        s0 = Sreg(0, 0, j)
        lo = 3 * gpg + 2 * j + 1 + 5
        ops = ["v_max3_f32 %s, %s, %s, %s" % (vr(t), vr(s0), vr(s0 + 1), vr(s0 + 2)),
               "v_max_f32 %s, %s, %s" % (vr(t), vr(t), vr(s0 + 3))] + xlane(t, u, "v_max_f32")
        ops += ["v_sub_f32 %s, 0, %s" % (vr(V_NEGM + 4 * j + r), vr(t)) for r in range(4)]
        ref.append([F(s, lo=lo, hi=8 * gpg + 2 * j - 3) for s in ops])
    fill = [F("v_mov_b32 %s, 0" % vr(V_L + j)) for j in range(nq)] + interleave(ref)
    for j in range(nq):
        for kb in range(2):
            for r in range(4):
                x = vr(Sreg(0, kb, j) + r)
                fill.append(F("v_add_f32 %s, %s, %s" % (x, x, vr(V_NEGM + 4 * j)), lo=7 * gpg + 2 * j + 6 if kb else 0))
    phase(g, "Q0", QK0, QKo, "Q1", ["K1"], nq, fill=fill + A0, dmas=kv_dma("V", 1, "V1"), tail=[adv(S_VO)],
          greedy=True, dmaend=4)
    stamp(g)
    PV0 = v_groups(0, 0, nq, first=True)

    backs = []

    def ret(n):
        return "s_mov_b32 %s, %d" % (sr(S_RET), n)

    def fork(n, p, z=False):
        e("s_cbranch_vccnz L1_RARE%d%s" % (p, sx))
        g.lab("L1_BACK%d%s" % (n, sx))
        backs.append((n, "L1_BACK%d%s" % (n, sx), p, z))

    def chk(B):
        r = B + check_ops(nq)
        r[-1].hi = 16 * gpg - 2
        return r
    phase(g, "Q1", QKo, PV0, "P0", ["V0"], nq, fill=chk(B0), dmas=kv_dma("K", 0, "K0"), tail=[adv(S_KO), ret(0)])
    fork(0, 0)
    pw = [(["v_lshlrev_b32 v254, 7, %s" % vr(V_LANE)] if k == 0 else [],
           "buffer_load_dword v255, v254, %s, s70 offen offset:%d" % (sr(S_WO, 4), 64 * k) + pol("pfpol"), "pf") for k in range(CFG["pfw"])]
    phase(g, "P0", PV0, QKe, "Qe", ["K0"], nq, fill=l_adds(nq) + A1, dmas=(pw if CFG["pfwat"] == 0 else []) + kv_dma("K", 1, "K1"),
          tail=[adv(S_KO), "s_mov_b32 %s, 14" % sr(S_CNT)])
    stamp(g)
    pl = [[], [], [], [], []]
    if CFG["pfl"]:
        e("v_lshlrev_b32 v253, 3, %s" % vr(V_LANE))
        e("s_sub_u32 s70, s70, 512")
        pl[CFG["pfl"]] = [(["s_add_u32 s70, s70, 512"],
                           "buffer_load_dwordx2 v[254:255], v253, %s, s70 offen" % sr(S_WO, 4) + pol("pfpol"), "pf")]
    if CFG["pfl2"]:
        pl[CFG["pfl2"]] = [([], "buffer_load_dwordx2 v[254:255], v253, %s, s70 offen" % sr(S_WO, 4), "pf")]
    g.vm = ["V1"] * 8 + ["pf"] * len(pl[4]) + ["K1"] * 8 + (["st"] if CFG["stamps"] else [])
    head_vm, head_lg = list(g.vm), list(g.lg)
    nd = CFG["nodmai"] and nq == 3
    g.out.append(".p2align 6")
    g.lab("L1_LOOP" + sx)
    phase(g, "Qe", QKe, PVo, "Po", ["V1"], nq, fill=chk(B1), dmas=pl[1] + kv_dma("V", 0, "V0"), tail=[adv(S_VO), ret(1)], nodma=nd)
    fork(1, 1)
    phase(g, "Po", PVo, QKo, "Qo", ["K1"], nq, fill=l_adds(nq) + A0, dmas=pl[2] + kv_dma("K", 0, "K0"), tail=[adv(S_KO)],
          nodma=nd)
    phase(g, "Qo", QKo, PVe, "Pe", ["V0"], nq, fill=chk(B0), dmas=pl[3] + kv_dma("V", 1, "V1"), tail=[adv(S_VO), ret(2)], nodma=nd)
    fork(2, 0)
    phase(g, "Pe", PVe, QKe, "Qe", ["K0"], nq, fill=l_adds(nq) + A1, dmas=pl[4] + kv_dma("K", 1, "K1"),
          tail=[adv(S_KO), "s_sub_u32 %s, %s, 1" % (sr(S_CNT), sr(S_CNT)), "s_cmp_lg_u32 %s, 0" % sr(S_CNT)],
          nodma=nd)
    if CFG["stamps"]:
        stamp(g)
        e("s_cmp_lg_u32 %s, 0" % sr(S_CNT))
    e("s_cbranch_scc1 L1_LOOP" + sx)
    assert g.vm == head_vm, (g.vm, head_vm)
    assert g.lg == head_lg, (g.lg, head_lg)
    if CFG["pf1"]:
        code_pf(g, CFG["pf1"], 8192, vr(V_LANE), 244, 252, "L1_FIN" + sx, "1" + sx)
    PVz = v_groups(1, 1, nq, z=True)
    E = [e_groups(c, nq) for c in range(7)]
    phase(g, "Qe", QKe, PVo, "Po", ["V1"], nq, fill=chk(B1), dmas=(pw if CFG["pfwat"] == 1 else []) + kv_dma("V", 0, "V0"),
          tail=[adv(S_VO), ret(3)])
    fork(3, 1)
    phase(g, "Po", PVo, QKo, "Qo", ["K1"], nq, fill=l_adds(nq) + A0, dmas=wo_dma(0))
    phase(g, "Qo", QKo, PVe, "Pe", ["V0"], nq, fill=chk(B0), dmas=kv_dma("V", 1, "V1"), tail=[ret(4)])
    fork(4, 0)
    phase(g, "Pe", PVe, PVz, "Pz", ["V1"], nq, fill=l_adds(nq) + chk(sm_all(1, nq, True)), dmas=wo_dma(1), tail=[ret(5)])
    fork(5, 1, True)
    stamp(g)

    def conv(m, j, lo=0, hi=None):
        t = V_T + 4 * ((m * nq + j) & 1) if False else V_T
        r = []
        for hh in range(2):
            for q in range(4):
                r.append(F("v_accvgpr_read_b32 %s, %s" % (vr(t + 4 * hh + q), ar(Oreg(2 * m + hh, j) + q)), lo=lo, hi=hi))
            for q in range(2):
                r.append(F("v_cvt_pk_bf16_f32 %s, %s, %s" % (
                    vr(Breg(m, j) + 2 * hh + q), vr(t + 4 * hh + 2 * q), vr(t + 4 * hh + 2 * q + 1)), lo=lo, hi=hi))
        return r
    fill = [F("v_add_u32 %s, 0x%x, %s" % (vr(V_EHI + x), 65536, vr(V_ELO + x))) for x in range(4)]
    fill += [F("v_add_u32 %s, 0x%x, %s" % (vr(V_EH2 + x), 131072, vr(V_ELO + x))) for x in range(4)]
    fill += [F("v_add_u32 %s, 0x%x, %s" % (vr(V_OS1 + x), (x + 1) * 14 * 16384, vr(V_OST))) for x in range(2)]
    fill += l_adds(nq)
    fill += [F(s) for s in interleave([xlane(V_L + j, V_TS + j, "v_add_f32") for j in range(nq)])]
    fill += [F("v_rcp_f32 %s, %s" % (vr(V_L + j), vr(V_L + j)), 2) for j in range(nq)]
    misc = fill
    fill = []
    MZ = CFG["mz"]
    for m in range(MZ):
        for j in range(nq):
            fill += conv(m, j, lo=(2 * m + 1) * gpg + 2 * j + 1 + 5)
    phase(g, "Pz", PVz, E[0], "E0", ["c0"], nq, fill=fill, dmas=wo_dma(2))
    stamp(g)

    def outs(c, late=False):
        r = []
        for x in range(2):
            st = S_T2 + x if c else S_XJ1 + x
            r.append(F("s_mov_b32 %s, 0x%x" % (sr(st), 0 if CFG["stsame"] else (2 * c + x) * 16384), 0))
            for j in range(nq):
                a, b = EACC[c & 1][2 * x * 3 + j], EACC[c & 1][(2 * x + 1) * 3 + j]
                pk = a if c else V_PK0 + 4 * (x * 3 + j)
                lo = ((8 * x + 7) * gpg + 2 * j + 1 + 5) if late else 3
                for y in (a, b):
                    for q in range(4):
                        r.append(F("v_mul_f32 %s, %s, %s" % (vr(y + q), vr(y + q), vr(V_L + j)), lo=lo))
                for n, y in enumerate((a, a + 2, b, b + 2)):
                    r.append(F("v_cvt_pk_bf16_f32 %s, %s, %s" % (vr(pk + n), vr(y), vr(y + 1)), lo=lo))
                va = V_OST if j == 0 else V_OS1 + j - 1
                r.append(F("buffer_store_dwordx4 %s, %s, %s, %s offen%s" % (
                    vr(pk, 4), vr(va), sr(S_P, 4), sr(st), pol("stpol")), 2, tag="po"))
        return r
    held = []
    for c in range(7):
        if c == 0:
            fill = []
            for m in range(MZ, 8):
                for j in range(nq):
                    fill += conv(m, j, lo=6 if m == 7 else 0, hi=(m >> 1) * 4 * gpg + 2 * j - 3)
            fill += misc
        else:
            fill = outs(c - 1)
        if c == 1:
            held = [f for f in fill if f.tag]
            fill = [f for f in fill if not f.tag]
        if c == 2:
            for n, f in enumerate(held):
                f.lo = 3 * gpg + 3 * n
            fill = held + fill
        last = []
        if c == 6:
            o = outs(6, True)
            h = len(o) // 2
            for f in fill:
                f.hi = 8 * gpg
            fill += o[:h]
            last = o[h:]
        dm = [wo_dma(3) + wo_dma(4), wo_dma(5), wo_dma(6), (), (), (), ()][c]
        phase(g, "E%d" % c, E[c], E[c + 1] if c < 6 else None, "E%d" % (c + 1), ["c%d" % (c + 1)], nq,
              fill=fill, dmas=dm, dmaend=[15, 15, 3, 0, 0, 0, 0][c], greedy=(c == 0), dense=(c == 2), nodma=CFG["nowo"])
        if CFG["estamps"]:
            stamp(g)
    g.c("last stores")
    for f in last:
        if f.tag:
            g.vmem(f.text, f.tag)
        else:
            e(f.text)
    stamp(g)
    if not sx:
        g.lab("L1_END")
    g.lab("L1_FIN" + sx)
    e("s_endpgm")
    rare(g, sx, nq, backs)


def kernel2():
    g = G()
    e = g.e
    g.lab(K2)
    if CFG["stamps"]:
        e("s_memtime s[96:97]")
        e("s_memrealtime s[98:99]")
    e("s_cmp_ge_u32 s2, 616")
    e("s_cbranch_scc1 L2_END")
    e("s_load_dwordx2 s[20:21], s[0:1], 80")
    e("s_load_dwordx2 s[22:23], s[0:1], 96")
    e("v_lshrrev_b32 v2, 6, v0")
    e("v_and_b32 v1, 63, v0")
    e("v_readfirstlane_b32 s3, v2")
    e("s_lshl_b32 s4, s2, 2")
    e("s_add_u32 s4, s4, s3")
    e("v_lshlrev_b32 v3, 4, v1")
    e("s_lshl_b32 s24, s4, 14")
    e("s_add_u32 s24, s24, 0x%x" % POFF)
    e("s_mov_b32 s30, 0x1000")
    e("s_mov_b32 s31, 0x2000")
    e("s_mov_b32 s32, 0x3000")
    srd(g, 8, 16384)
    e("s_waitcnt lgkmcnt(0)")
    e("s_add_u32 s8, s22, s24")
    e("s_addc_u32 s9, s23, 0")
    for h in range(16):
        g.vmem("buffer_load_dwordx4 %s, v3, s[8:11], %s offen offset:%d%s" % (
            vr(16 + 4 * h, 4), ["0", "s30", "s31", "s32"][h >> 2], (h & 3) * 1024, pol("k3pol")), h)
    if CFG["stamps"]:
        e("s_lshl_b32 s91, s4, 8")
        e("s_add_u32 s91, s91, 0x%x" % (STAMP_OFF + 1024 * 256))
        e("s_add_u32 %s, s22, s91" % sr(S_ST))
        e("s_addc_u32 %s, s23, 0" % sr(S_ST + 1))
        srd(g, S_ST, 256)
        e("v_lshlrev_b32 v0, 8, v1")
        e("s_mov_b32 s91, 0")
        stamp(g, True)
    e("s_mul_i32 s5, s4, 4682")
    e("s_lshr_b32 s5, s5, 16")
    e("s_mul_i32 s6, s5, 14")
    e("s_sub_u32 s6, s4, s6")
    e("s_cmp_ge_u32 s5, 88")
    e("s_cselect_b32 s7, 1, 0")
    e("s_mul_i32 s24, s7, 88")
    e("s_sub_u32 s5, s5, s24")
    e("s_mul_i32 s24, s5, %d" % (16 * 1792))
    e("s_mul_i32 s26, s7, 896")
    e("s_add_u32 s24, s24, s26")
    e("s_lshl_b32 s26, s6, 6")
    e("s_add_u32 s24, s24, s26")
    e("s_add_u32 s12, s20, s24")
    e("s_addc_u32 s13, s21, 0")
    e("s_sub_u32 s26, %d, s24" % (1408 * 1792))
    srd(g, 12, "s26")
    e("v_and_b32 v4, 15, v1")
    e("v_mul_u32_u24 v4, 0x700, v4")
    e("v_lshrrev_b32 v5, 4, v1")
    e("v_lshl_add_u32 v4, v5, 3, v4")
    e("s_mov_b32 s33, 0xffff0000")
    for h in range(16):
        g.wait(vm_tags=[h])
        if h == 0:
            stamp(g)
        for r in range(4):
            x = 16 + 4 * h + r
            if h == 0:
                e("v_lshlrev_b32 v%d, 16, v%d" % (6 + 2 * r, x))
                e("v_and_b32 v%d, s33, v%d" % (7 + 2 * r, x))
            else:
                e("v_lshlrev_b32 v80, 16, v%d" % x)
                e("v_and_b32 v81, s33, v%d" % x)
                e("v_add_f32 v%d, v%d, v80" % (6 + 2 * r, 6 + 2 * r))
                e("v_add_f32 v%d, v%d, v81" % (7 + 2 * r, 7 + 2 * r))
    for r in range(4):
        e("v_cvt_pk_bf16_f32 v%d, v%d, v%d" % (16 + r, 6 + 2 * r, 7 + 2 * r))
    stamp(g)
    e("buffer_store_dwordx2 v[16:17], v4, s[12:15], 0 offen")
    e("buffer_store_dwordx2 v[18:19], v4, s[12:15], 0 offen offset:32")
    stamp(g)
    g.lab("L2_END")
    e("s_endpgm")
    return g.out


def desc(name, nv, acc):
    return [".p2align 6", ".amdhsa_kernel " + name,
            "  .amdhsa_next_free_vgpr %d" % nv,
            "  .amdhsa_next_free_sgpr 102",
            "  .amdhsa_accum_offset %d" % acc,
            "  .amdhsa_group_segment_fixed_size 0",
            "  .amdhsa_kernarg_size 104",
            "  .amdhsa_user_sgpr_count 2",
            "  .amdhsa_user_sgpr_kernarg_segment_ptr 1",
            "  .amdhsa_system_sgpr_workgroup_id_x 1",
            ".end_amdhsa_kernel"]


def build():
    ref = open("cdna_kernels/%s.s.ref" % NAME).read().split("\n")
    head = []
    for ln in ref:
        if ln.startswith("; Override") or ln.startswith("; grid=") or ln.startswith("; @launch"):
            continue
        if not ln.startswith(";"):
            break
        head.append(ln)
    out = head + [
        "; @launch kernel=%s grid=(256,1,1) block=(256,1,1) lds=%d" % (K1, LDS1),
        "; @launch kernel=%s grid=(616,1,1) block=(256,1,1) lds=0" % K2,
        '.amdgcn_target "amdgcn-amd-amdhsa--gfx950"', ".text"]
    for name, body in ((K1, kernel1()), (K2, kernel2())):
        out += [".globl " + name, ".p2align 8", ".type %s,@function" % name] + body
    out += ['.section .rodata,"a"'] + desc(K1, 512, 256) + desc(K2, 84, 84)
    return "\n".join(out) + "\n"


if __name__ == "__main__":
    path = "cdna_kernels/%s.s" % NAME
    for a in sys.argv[1:]:
        if "=" in a:
            k, v = a.split("=")
            CFG[k] = v if isinstance(CFG[k], str) else type(CFG[k])(eval(v))
        else:
            path = a
    open(path, "w").write(build())
    print("wrote", path)
```

```python
import math
import struct
import sys
from hzlib import parse, need, short

NAME = "concat_heads__gqa_block_cached__mha_block_cached__near_ridge"
K1 = NAME + "_kernel"
K2 = "hsum_kernel"

CFG = dict(
    stamps=False,
    thr=4096.0,
    w3=True,
    kvpol="nt",
    stpol="sc0_sc1",
    k3pol="",
    splitA=72,
    scost=0,
    dcost=2,
    wfirst=True,
    barg=12,
    boff=2,
    dmaend=16,
    nodmai=False,
    nolg0=False,
    verbose=False,
    estamps=False,
    wstamps=False,
    nost=False,
    nowo=False,
    stsame=False,
    pf0=0,
    pf1=0,
    pfc=1,
    pfw=1,
    pfq=0,
    wqpol="nt",
    xpol="",
    wopol="",
    pfpol="",
    pcpol="",
    pfl=0,
    pfwat=-1,
    pfl2=0,
    w5end=15,
    mz=4,
    map=0,
    vlast=1,
    pstamps=False,
    vzend=16,
    xt=1,
    xtg=4,
    xts=3,
    xsame=0,
    skip=0,
    dry=0,
    wqsame=0,
)


def f32bits(x):
    return struct.unpack("<I", struct.pack("<f", x))[0]


def pol(k):
    return (" " + CFG[k].replace("_", " ")) if CFG[k] else ""


SLOT = 33792
KS = [0, SLOT]
VS = [2 * SLOT, 3 * SLOT, 0]
LDS1 = 163840
KP = 1040
VP = 1056
ER = [0, 32768, 65536, 98304, 131072, 0, 32768]
POFF = 64 << 20
STAMP_OFF = 30408704
GRP = 11 * 14 * 16384


class G:
    def __init__(self):
        self.out = []
        self.lg = []
        self.vm = []
        self.hist = []
        self.where = ""
        self.nops = {}

    def e(self, s):
        d = parse(s)
        m = short(self.hist, d)
        if m > 0:
            t = "s_nop %d" % (m - 1)
            self.out.append(" " + t)
            self.hist.append(parse(t))
            self.nops[self.where] = self.nops.get(self.where, 0) + m
        self.out.append(" " + s)
        self.hist.append(d)
        self.hist = self.hist[-16:]

    def lab(self, s):
        self.out.append(s + ":")

    def c(self, s):
        self.out.append(" ; " + s)
        self.where = s

    def ds(self, s, tag):
        self.e(s)
        self.lg.append(tag)

    def vmem(self, s, tag):
        self.e(s)
        self.vm.append(tag)
        assert len(self.vm) <= 63, "too many vmem outstanding"

    @staticmethod
    def _need(q, tags, mx):
        idx = -1
        for i, t in enumerate(q):
            if t in tags:
                idx = i
        if idx < 0:
            return None
        return min(len(q) - 1 - idx, mx)

    def wait(self, lg_tags=(), vm_tags=(), lg0=False, vm0=False):
        parts = []
        n = 0 if (vm0 and self.vm) else self._need(self.vm, set(vm_tags), 63)
        if n is not None:
            parts.append("vmcnt(%d)" % n)
            self.vm = self.vm[len(self.vm) - n:] if n else []
        n = 0 if (lg0 and self.lg) else self._need(self.lg, set(lg_tags), 15)
        if n is not None:
            parts.append("lgkmcnt(%d)" % n)
            self.lg = self.lg[len(self.lg) - n:] if n else []
        if parts:
            self.e("s_waitcnt " + " ".join(parts))


def vr(b, n=1):
    return "v%d" % b if n == 1 else "v[%d:%d]" % (b, b + n - 1)


def ar(b, n=1):
    return "a%d" % b if n == 1 else "a[%d:%d]" % (b, b + n - 1)


def sr(b, n=1):
    return "s%d" % b if n == 1 else "s[%d:%d]" % (b, b + n - 1)


MF = "v_mfma_f32_16x16x32_bf16"

S_X, S_K, S_V, S_WQ, S_WO, S_P = 44, 48, 52, 56, 60, 64
S_WAVE, S_M0K, S_M0V, S_KO, S_VO, S_CNT, S_THR = 72, 73, 74, 75, 76, 77, 78
S_SC = 80
S_T0, S_T1, S_T2, S_T3 = 82, 83, 84, 85
S_XJ1, S_XJ2 = 87, 88
S_M0E = 89
S_RET = 90
S_ST = 92
S_TS = 96
V_KRD, V_VRD, V_D0, V_D1, V_OST, V_WOD, V_LANE = 1, 2, 3, 4, 5, 6, 7
V_L, V_TS, V_TMP = 8, 11, 14
V_NEGM = 16
V_T = 28
V_ELO = 36
V_P1 = 40
V_P0 = [52, 224]
V_P1Z = 160
V_Q = 64
V_S = 128
V_X = 236
V_EHI = 236
V_EH2 = 24
V_VZ = 253
V_PK0 = 40
V_OS1 = 240
V_QLO, V_QHI, V_WQD, V_XO = 40, 41, 42, 43
V_XW, V_XR = 45, 46
XBUF = 4 * SLOT
V_ACC = 64
V_B = 64
EACC = [[176 + 4 * i for i in range(12)],
        [160, 164, 168, 172, 224, 228, 232, 244, 248, 252, 16, 20]]
A_O = 0
A_RING = 192
A_Q = 224


def Sreg(p, kb, j):
    return V_S + p * 48 + (kb * 3 + j) * 4


def Preg(p, kg, j, z=False):
    if kg == 0:
        return V_P0[p] + 4 * j
    return (V_P1Z if z else V_P1) + 4 * j


def Qop(j, s):
    f = j * 8 + s
    if f < 16:
        return vr(V_Q + 4 * f, 4)
    return ar(A_Q + 4 * (f - 16), 4)


def Oreg(D, j):
    return A_O + (D * 3 + j) * 4


def Accreg(D, j):
    return V_ACC + (j * 8 + (D >> 1)) * 8 + (D & 1) * 4


def Xreg(j, ks):
    return (ks * 3 + j) * 4


def Breg(m, j):
    return V_B + (m * 3 + j) * 4


def ring(k, f):
    return A_RING + 8 * (k & 3) + 4 * f


def tr2(b, va, off, second):
    return ["ds_read_b64_tr_b16 %s, %s offset:%d" % (ar(b, 2), vr(va), off),
            "ds_read_b64_tr_b16 %s, %s offset:%d" % (ar(b + 2, 2), vr(va), off + second)]


def k_groups(slot, p, nq, zero_kb=()):
    gr = []
    for kb in range(4):
        kg, par = kb >> 1, kb & 1
        for sp in range(4):
            k = len(gr)
            rd, mf = [], []
            for f in range(2):
                off = KS[slot] + kg * 16 * KP + par * 512 + 32 * (2 * sp + f)
                rd.append("ds_read_b128 %s, %s offset:%d" % (ar(ring(k, f), 4), vr(V_KRD), off))
            for j in range(nq):
                for f in range(2):
                    s = 2 * sp + f
                    d = vr(Sreg(p, kb, j), 4)
                    cc = d if s else ("0" if kb in zero_kb else vr(V_NEGM + 4 * j, 4))
                    mf.append("%s %s, %s, %s, %s" % (MF, d, ar(ring(k, f), 4), Qop(j, s), cc))
            gr.append((rd, mf))
    return gr


def v_groups(slot, p, nq, first=False, z=False):
    gr = []
    for D in range(16):
        rd, mf = [], []
        for kg in range(2):
            if slot == 2:
                rd += tr2(ring(D, kg), V_VZ, kg * 16 * VP + 32 * D, 512)
            else:
                rd += tr2(ring(D, kg), V_VRD, VS[slot] - VS[0] + kg * 16 * VP + 32 * D, 512)
        for j in range(nq):
            for kg in range(2):
                d = ar(Oreg(D, j), 4)
                cc = "0" if (first and kg == 0) else d
                mf.append("%s %s, %s, %s, %s" % (MF, d, ar(ring(D, kg), 4), vr(Preg(p, kg, j, z), 4), cc))
        gr.append((rd, mf))
    return gr


WRING = [KS[1], VS[0], VS[1], KS[0]]


def w_groups(t, nq):
    base = WRING[t & 3]
    va, rel = (V_QLO, base) if base < VS[0] else (V_QHI, base - VS[0])
    gr = []
    for D in range(16):
        rd, mf = [], []
        for kg in range(2):
            rd += tr2(ring(D, kg), va, rel + kg * 16 * VP + 32 * (D >> 1) + 8 * (D & 1), 512)
        for j in range(nq):
            for kg in range(2):
                d = vr(Accreg(D, j), 4)
                cc = "0" if (t == 0 and kg == 0) else d
                mf.append("%s %s, %s, %s, %s" % (MF, d, ar(ring(D, kg), 4), ar(Xreg(j, 2 * t + kg), 4), cc))
        gr.append((rd, mf))
    return gr


def e_order(c):
    if c == 0:
        return [(E, mp) for mp in range(4) for E in range(4)]
    return [(E, mp) for E in range(4) for mp in range(4)]


def e_groups(c, nq):
    va, rel = [V_ELO, V_EHI, V_EH2][ER[c] >> 16], ER[c] & 0xffff
    gr = []
    for E, mp in e_order(c):
        k = len(gr)
        rd, mf = [], []
        for f in range(2):
            rd += tr2(ring(k, f), va + E, rel + (2 * mp + f) * 4096, 2048)
        for j in range(nq):
            for f in range(2):
                m = 2 * mp + f
                d = vr(EACC[c & 1][E * 3 + j], 4)
                mf.append("%s %s, %s, %s, %s" % (MF, d, ar(ring(k, f), 4), vr(Breg(m, j), 4), d if m else "0"))
        gr.append((rd, mf))
    return gr


def kv_dma(kind, slot, tag):
    res = []
    srd_, so, m0b, pitch, sb = (S_K, S_KO, S_M0K, KP, KS[slot]) if kind == "K" else (S_V, S_VO, S_M0V, VP, VS[slot])
    for u in range(8):
        m0 = sb + u * pitch - (u & 3) * 1024
        res.append((["s_add_u32 m0, %s, 0x%x" % (sr(m0b), m0)],
                    "buffer_load_dwordx4 %s, %s, %s offen offset:%d%s lds" % (
                        vr(V_D0 + (u >> 2)), sr(srd_, 4), sr(so), (u & 3) * 1024, pol("kvpol")), tag))
    return res


def wq_dma(t):
    res = []
    for u in range(8):
        so = (0 if CFG["wqsame"] else t) * 64 * 8192 + (8 * (u >> 2) + (u & 3)) * 8192
        st = S_T0 + (u & 1)
        res.append((["s_mov_b32 %s, 0x%x" % (sr(st), so),
                     "s_add_u32 m0, %s, 0x%x" % (sr(S_M0V), WRING[t & 3] + u * VP)],
                    "buffer_load_dwordx4 %s, %s, %s offen%s lds" % (vr(V_WQD), sr(S_WQ, 4), sr(st), pol("wqpol")), "wq%d" % t))
    return res


def wo_dma(c):
    res = []
    for u in range(8):
        st = S_T0 + (u & 1)
        res.append((["s_mov_b32 %s, 0x%x" % (sr(st), c * 128 + u * 7168),
                     "s_add_u32 m0, %s, 0x%x" % (sr(S_M0E), ER[c] + u * 1024)],
                    "buffer_load_dwordx4 %s, %s, %s offen%s lds" % (vr(V_WOD), sr(S_WO, 4), sr(st), pol("wopol")), "c%d" % c))
    return res


def x_turn(t, nq):
    r = []
    for j in range(nq):
        for hh in range(2):
            r.append("ds_write_b128 %s, %s offset:%d" % (vr(V_XW), ar(Xreg(j, 2 * t + hh), 4), (2 * j + hh) * 1024))
        for s in range(2):
            r.append("ds_read_b128 %s, %s offset:%d" % (ar(Xreg(j, 2 * t + s), 4), vr(V_XR + s), j * 2048))
    return r


def x_loads(t, nq):
    res = []
    if CFG["xt"]:
        for j in range(nq):
            for hh in range(2):
                so = ["0", sr(S_XJ1), sr(S_XJ2)][j]
                res.append(([], "buffer_load_dwordx4 %s, %s, %s, %s offen offset:%d%s" % (
                    ar(Xreg(j, 2 * t + hh), 4), vr(V_XO + hh), sr(S_X, 4), so, 128 * t, pol("xpol")), "x%d" % t))
        return res
    for ks in (2 * t, 2 * t + 1):
        for j in range(nq):
            so = ["0", sr(S_XJ1), sr(S_XJ2)][j]
            res.append(([], "buffer_load_dwordx4 %s, %s, %s, %s offen offset:%d%s" % (
                ar(Xreg(j, ks), 4), vr(V_XO), sr(S_X, 4), so, 64 * (ks & 1 if CFG["xsame"] else ks), pol("xpol")), "x%d" % t))
    return res


class F:
    def __init__(self, text, cost=1, lo=0, hi=None, tag=None):
        self.text, self.cost, self.lo, self.hi, self.tag = text, cost, lo, hi, tag


def sm_unit(p, kg, j, z=False):
    src = [Sreg(p, 2 * kg, j) + r for r in range(4)] + [Sreg(p, 2 * kg + 1, j) + r for r in range(4)]
    t = [V_T + i for i in range(8)]
    ts = V_TS + j
    P = Preg(p, kg, j, z)

    def ex(i):
        return F("v_exp_f32 %s, %s" % (vr(t[i]), vr(src[i])), 2)

    def ad(i):
        return F("v_add_f32 %s, %s, %s" % (vr(ts), vr(ts), vr(t[i])))

    def cv(i):
        return F("v_cvt_pk_bf16_f32 %s, %s, %s" % (vr(P + i), vr(t[2 * i]), vr(t[2 * i + 1])))
    if kg == 0:
        a01 = [F("v_add_f32 %s, %s, %s" % (vr(ts), vr(t[0]), vr(t[1])))]
    else:
        a01 = [ad(0), ad(1)]
    return [ex(0), ex(1), ex(2), ex(3)] + a01 + [cv(0), ex(4), ad(2), ex(5), ad(3), cv(1), ex(6), ad(4), ex(7), ad(5),
                                                 cv(2), ad(6), ad(7), cv(3)]


def sm_all(p, nq, z=False):
    r = []
    for kg in range(2):
        for j in range(nq):
            r += sm_unit(p, kg, j, z)
    return r


def sm_split(p, nq):
    a = sm_all(p, nq)
    lim = min(CFG["splitA"] * nq // 3, 27 * nq)
    c = n = 0
    while c + a[n].cost <= lim:
        c += a[n].cost
        n += 1
    return a[:n], a[n:]


def l_adds(nq):
    return [F("v_add_f32 %s, %s, %s" % (vr(V_L + j), vr(V_L + j), vr(V_TS + j))) for j in range(nq)]


def check_ops(nq):
    if nq == 3:
        m = "v_max3_f32 %s, %s, %s, %s" % (vr(V_TMP), vr(V_TS), vr(V_TS + 1), vr(V_TS + 2))
    else:
        m = "v_max_f32 %s, %s, %s" % (vr(V_TMP), vr(V_TS), vr(V_TS + 1))
    return [F(m), F("v_cmp_nge_f32 vcc, %s, %s" % (sr(S_THR), vr(V_TMP)))]


def xlane(d, u, op):
    r = []
    for sw in ("v_permlane32_swap_b32", "v_permlane16_swap_b32"):
        r += ["v_mov_b32 %s, %s" % (vr(u), vr(d)), "%s %s, %s" % (sw, vr(d), vr(u)),
              "%s %s, %s, %s" % (op, vr(d), vr(d), vr(u))]
    return r


def interleave(lists):
    r = []
    for n in range(max(len(x) for x in lists)):
        for x in lists:
            if n < len(x):
                r.append(x[n])
    return r


def sched(fill, free, greedy=False, win=14):
    n = len(free)
    P = [parse(f.text) for f in fill]
    N = len(fill)
    deps = [[] for _ in range(N)]
    for i in range(N):
        for j in range(i):
            if (P[j]['w'] & (P[i]['r'] | P[i]['w'])) or (P[j]['r'] & P[i]['w']) or (
                    P[i]['k'] == 'vmem' and P[j]['k'] == 'vmem'):
                deps[i].append((j, need(P[j], P[i])))
    hi = [min(n - 1, f.hi) if f.hi is not None else n - 1 for f in fill]
    for i in range(N - 1, -1, -1):
        for j, w in deps[i]:
            hi[j] = min(hi[j], hi[i] - w)
    gap = [None] * N
    place = [[] for _ in range(n)]
    left = list(range(N))
    carry = 0.0
    credit = 0.0
    suf = [0] * (n + 1)
    for k in range(n - 1, -1, -1):
        suf[k] = suf[k + 1] + free[k]

    def ready(i, k):
        return fill[i].lo <= k and all(gap[j] is not None and gap[j] + w <= k for j, w in deps[i])

    for k in range(n):
        frac = extra = 0.0
        for d in sorted(set(hi[i] for i in left)):
            nd = sum(fill[i].cost for i in left if hi[i] <= d)
            cap = suf[k] - suf[max(d, k) + 1]
            frac = max(frac, nd / cap if cap else 9.0)
            extra = max(extra, (nd - cap * 0.97) / (max(d, k) - k + 1))
        carry += max(0.0, extra)
        add = int(carry + 1e-9)
        carry -= add
        room = free[k] + add
        credit += (room if greedy else min(1.0, frac * 1.06) * free[k] + add)
        credit = min(credit, 3.0)
        while left:
            order = sorted(left, key=lambda i: (hi[i], i))[:win]
            urgent = [i for i in order if hi[i] <= k and all(gap[j] is not None for j, _ in deps[i])]
            pick = None
            if urgent:
                pick = urgent[0]
            else:
                cand = [i for i in order if ready(i, k) and fill[i].cost <= room and (fill[i].cost == 0 or credit >= 0.75)]
                if cand:
                    big = [i for i in cand if fill[i].cost >= 2]
                    zero = [i for i in cand if fill[i].cost == 0]
                    pick = zero[0] if zero else (big[0] if big else cand[0])
            if pick is None:
                break
            gap[pick] = k
            place[k].append(fill[pick])
            left.remove(pick)
            room -= fill[pick].cost
            credit -= fill[pick].cost
    assert not left
    return place


def issue_first(g, grp, ph):
    for k in range(3):
        for s in grp[k][0]:
            g.ds(s, (ph, k))


def phase(g, ph, grp, nxt, nxt_ph, bar_vm, nq, fill=(), dmas=(), tail=(), greedy=False, dmaend=None, nodma=False,
          dense=False, dry=0, inloop=False, xt=None):
    g.c("phase " + ph)
    gpg = 2 * nq
    ngap = 16 * gpg
    BG = CFG["barg"]
    sc = CFG["scost"]
    fixed = [[] for _ in range(ngap)]
    X = BG * gpg + gpg - 1 + CFG["boff"] * nq // 3
    for k in range(16):
        if k + 3 < 16:
            todo = [(s, (ph, k + 3)) for s in grp[k + 3][0]]
            for n, (s, tag) in enumerate(todo):
                step = 2 if (len(todo) == 2 and k != BG) else 1
                fixed[k * gpg + n * step].append(("ds", s, tag, 1))
        if k + 1 < 16:
            if nxt is None or k * gpg + gpg - 1 < X:
                fixed[k * gpg + gpg - 1].append(("w", None, (ph, k + 1), sc))
        elif nxt is not None:
            fixed[k * gpg + gpg - 1].append(("w", None, (nxt_ph, 0), sc))
    if nxt is not None:
        fixed[X].append(("bar", None, None, 2))
        x = X + 1
        for k in range(3):
            x = max(x, (13 + k) * gpg)
            for s in nxt[k][0]:
                fixed[min(x, ngap - 1)].append(("ds", s, (nxt_ph, k), 1))
                x += 1
    nd = len(dmas)
    de = (CFG["dmaend"] if dmaend is None else dmaend) * gpg
    used = set()
    for n, (pre, ins, tag) in enumerate(dmas):
        gi = 1 + (n * (de - 2)) // nd
        while gi in used or any(y[0] in ("ds", "bar") for y in fixed[gi]) and nq == 3 and nd <= 16 and not dense:
            gi += 1
        used.add(gi)
        for s in pre:
            fixed[gi - 1].append(("s", s, None, sc))
        fixed[gi].append(("dma", ins, tag, CFG["dcost"]))
    assert max(used, default=0) < ngap - 2 * len(tail)
    if xt is not None:
        x = CFG["xtg"] * gpg
        fixed[x].append(("vw", None, "x%d" % xt, 0))
        for s in x_turn(xt, nq):
            fixed[x].append(("ds", s, "xt", 1))
            x += CFG["xts"]
        assert x - CFG["xts"] < X
    for n, s in enumerate(tail):
        fixed[ngap - 1 - (len(tail) - 1 - n)].append(("s", s, None, sc))
    free = [max(0, 2 - sum(x[3] for x in fixed[k])) for k in range(ngap)]
    place = sched(list(fill), free, greedy)
    if CFG["verbose"]:
        load = [sum(x[3] for x in fixed[k]) + sum(f.cost for f in place[k]) for k in range(ngap)]
        print("%-4s nq%d free %3d fill %3d over %3d  %s" % (ph, nq, sum(free), sum(f.cost for f in fill),
              sum(max(0, x - 2) for x in load), "".join(str(min(x, 9)) for x in load)))
    g.wait(lg_tags=[(ph, 0)])
    ndm = 0
    for k in range(16):
        for n, m in enumerate(grp[k][1]):
            if dry:
                x = k * gpg + n
                c = (dry * 3 * (x + 1)) // (10 * nq) - (dry * 3 * x) // (10 * nq)
                g.e("s_nop %d" % (c - 1))
            else:
                g.e(m)
            x = k * gpg + n
            fx = fixed[x]
            dmapre = [y for y in fx if y[0] == "s"]
            hasdma = any(y[0] == "dma" for y in fx)
            if CFG["wfirst"]:
                for kind, s, tag, _ in fx:
                    if kind == "w":
                        g.wait(lg_tags=[tag])
            if not hasdma:
                for y in dmapre:
                    g.e(y[1])
            for kind, s, tag, _ in fx:
                if kind == "dma":
                    ndm += 1
                    if nodma or (inloop and ndm <= CFG["skip"]):
                        g.vm.append(tag)
                    else:
                        g.vmem(s, tag)
            if hasdma:
                for y in dmapre:
                    g.e(y[1])
            for kind, s, tag, _ in fx:
                if kind == "vw":
                    g.wait(vm_tags=[tag])
                if kind == "ds":
                    if dry:
                        g.lg.append(tag)
                    else:
                        g.ds(s, tag)
            for f in ([] if dry else place[x]):
                if f.tag and CFG["nost"]:
                    g.vm.append(f.tag)
                elif f.tag:
                    g.vmem(f.text, f.tag)
                else:
                    g.e(f.text)
            for kind, s, tag, _ in fx:
                if kind == "w" and not CFG["wfirst"]:
                    g.wait(lg_tags=[tag])
                elif kind == "bar":
                    g.wait(vm_tags=bar_vm, lg0=True)
                    g.e("s_barrier")


def rowmax(g, p, nq, dst):
    for j in range(nq):
        rs = [Sreg(p, kb, j) + r for kb in range(4) for r in range(4)]
        d = vr(dst + j)
        g.e("v_max3_f32 %s, %s, %s, %s" % (d, vr(rs[0]), vr(rs[1]), vr(rs[2])))
        for k in range(3, 15, 2):
            g.e("v_max3_f32 %s, %s, %s, %s" % (d, d, vr(rs[k]), vr(rs[k + 1])))
        g.e("v_max_f32 %s, %s, %s" % (d, d, vr(rs[15])))
    for s in interleave([xlane(dst + j, V_X + 8 + j, "v_max_f32") for j in range(nq)]):
        g.e(s)


def sub_S(g, p, nq, dl):
    for j in range(nq):
        for kb in range(4):
            for r in range(4):
                x = vr(Sreg(p, kb, j) + r)
                g.e("v_sub_f32 %s, %s, %s" % (x, x, vr(dl + j)))


def rare(g, sx, nq, backs):
    dl = V_X
    sc = V_X + 4
    for p in range(2):
        g.lab("L1_RARE%d%s" % (p, sx))
        g.c("rare %d" % p)
        g.e("s_nop 7")
        rowmax(g, p, nq, dl)
        if p == 0:
            g.e("s_branch L1_RESC" + sx)
    g.lab("L1_RESC" + sx)
    for j in range(nq):
        g.e("v_max_f32 %s, 0, %s" % (vr(dl + j), vr(dl + j)))
    for j in range(nq):
        g.e("v_exp_f32 %s, -%s" % (vr(sc + j), vr(dl + j)))
    sub_S(g, 0, nq, dl)
    sub_S(g, 1, nq, dl)
    for j in range(nq):
        for r in range(4):
            x = vr(V_NEGM + 4 * j + r)
            g.e("v_sub_f32 %s, %s, %s" % (x, x, vr(dl + j)))
        g.e("v_mul_f32 %s, %s, %s" % (vr(V_L + j), vr(V_L + j), vr(sc + j)))
    for D in range(16):
        for j in range(nq):
            for r in range(4):
                g.e("v_accvgpr_read_b32 %s, %s" % (vr(V_T + r), ar(Oreg(D, j) + r)))
            for r in range(4):
                g.e("v_mul_f32 %s, %s, %s" % (vr(V_T + r), vr(V_T + r), vr(sc + j)))
            for r in range(4):
                g.e("v_accvgpr_write_b32 %s, %s" % (ar(Oreg(D, j) + r), vr(V_T + r)))
    kinds = sorted(set((p, z) for _, _, p, z in backs))
    for n, (p, z) in enumerate(kinds[1:]):
        for rid, lab, pp, zz in backs:
            if (pp, zz) == (p, z):
                g.e("s_cmp_eq_u32 %s, %d" % (sr(S_RET), rid))
                g.e("s_cbranch_scc1 L1_POST%d%s" % (n + 1, sx))
    for n, (p, z) in enumerate(kinds):
        g.lab("L1_POST%d%s" % (n, sx))
        for f in sm_all(p, nq, z):
            g.e(f.text)
        mine = [(rid, lab) for rid, lab, pp, zz in backs if (pp, zz) == (p, z)]
        for rid, lab in mine[:-1]:
            g.e("s_cmp_eq_u32 %s, %d" % (sr(S_RET), rid))
            g.e("s_cbranch_scc1 %s" % lab)
        g.e("s_nop 1")
        g.e("s_branch %s" % mine[-1][1])


def stamp(g, early=False):
    if not CFG["stamps"]:
        return
    if not early:
        g.e("s_memtime %s" % sr(S_TS, 2))
        g.e("s_memrealtime %s" % sr(S_TS + 2, 2))
    g.e("s_waitcnt lgkmcnt(0)")
    g.e("v_mov_b32 v14, %s" % sr(S_TS))
    g.e("v_mov_b32 v15, %s" % sr(S_TS + 2))
    g.vmem("buffer_store_dwordx2 v[14:15], v0, %s, s91 offen" % (sr(S_ST, 4)), "st")
    g.e("s_add_u32 s91, s91, 8")


def srd(g, d, nrec):
    if isinstance(nrec, int):
        g.e("s_mov_b32 %s, 0x%x" % (sr(d + 2), nrec))
    else:
        g.e("s_mov_b32 %s, %s" % (sr(d + 2), nrec))
    g.e("s_mov_b32 %s, 0x20000" % sr(d + 3))


def add64(g, d, off):
    g.e("s_add_u32 %s, %s, %s" % (sr(d), sr(d), off))
    g.e("s_addc_u32 %s, %s, 0" % (sr(d + 1), sr(d + 1)))


def issue(g, pieces):
    for pre, ins, tag in pieces:
        for s in pre:
            g.e(s)
        g.vmem(ins, tag)


def code_pf(g, n, step, vidx, va, vd, end, uid):
    e = g.e
    e("s_getpc_b64 s[68:69]")
    g.lab("L1_PC" + uid)
    for k in range(n):
        e("v_lshlrev_b32 %s, 7, %s" % (vr(va + 2 * k), vidx))
        if k:
            e("v_add_u32 %s, 0x%x, %s" % (vr(va + 2 * k), k * step, vr(va + 2 * k)))
        e("v_min_u32 %s, %s-L1_PC%s-4, %s" % (vr(va + 2 * k), end, uid, vr(va + 2 * k)))
        e("v_mov_b32 %s, s69" % vr(va + 2 * k + 1))
        e("v_add_co_u32 %s, vcc, s68, %s" % (vr(va + 2 * k), vr(va + 2 * k)))
        e("v_addc_co_u32 %s, vcc, 0, %s, vcc" % (vr(va + 2 * k + 1), vr(va + 2 * k + 1)))
        g.vmem("global_load_dword %s, %s, off" % (vr(vd + k), vr(va + 2 * k, 2)), "pf")


def kernel1():
    g = G()
    e = g.e
    g.lab(K1)
    if CFG["stamps"]:
        e("s_memtime s[96:97]")
        e("s_memrealtime s[98:99]")
    e("s_cmp_ge_u32 s2, 256")
    e("s_cbranch_scc1 L1_END")
    e("s_load_dwordx16 s[16:31], s[0:1], 0")
    e("s_load_dwordx8 s[32:39], s[0:1], 64")
    e("s_load_dwordx2 s[40:41], s[0:1], 96")
    e("s_and_b32 s4, s2, 7")
    e("s_lshr_b32 s5, s2, 3")
    if CFG["pfc"]:
        e("s_getpc_b64 s[68:69]")
        g.lab("L1_PC")
        e("s_lshl_b32 s6, s5, 12")
        e("v_lshl_add_u32 v56, v0, 4, s6")
        e("v_min_u32 v56, L2_END-L1_PC-16, v56")
        e("v_mov_b32 v57, s69")
        e("v_add_co_u32 v56, vcc, s68, v56")
        e("v_addc_co_u32 v57, vcc, 0, v57, vcc")
        g.vmem("global_load_dwordx4 v[52:55], v[56:57], off" + pol("pcpol"), "pf")
    if CFG["map"] == 0:
        e("s_lshr_b32 s6, s5, 4")
        e("s_xor_b32 s6, s6, 1")
        e("s_bfe_u32 s7, s5, 0x30001")
        e("s_and_b32 s8, s5, 1")
        e("s_lshl_b32 s9, s4, 1")
        e("s_add_u32 s8, s8, s9")
    elif CFG["map"] == 1:
        e("s_and_b32 s6, s4, 1")
        e("s_lshr_b32 s7, s5, 2")
        e("s_and_b32 s8, s5, 3")
        e("s_and_b32 s9, s4, 6")
        e("s_lshl_b32 s9, s9, 1")
        e("s_add_u32 s8, s8, s9")
    else:
        e("s_lshr_b32 s6, s5, 4")
        e("s_xor_b32 s6, s6, 1")
        e("s_bfe_u32 s7, s5, 0x20002")
        e("s_and_b32 s9, s4, 1")
        e("s_lshl_b32 s9, s9, 2")
        e("s_add_u32 s7, s7, s9")
        e("s_and_b32 s8, s5, 3")
        e("s_and_b32 s9, s4, 6")
        e("s_lshl_b32 s9, s9, 1")
        e("s_add_u32 s8, s8, s9")
    L = vr(V_LANE)
    e("v_and_b32 %s, 63, v0" % L)
    e("v_lshrrev_b32 v9, 6, v0")
    e("v_and_b32 v10, 15, %s" % L)
    e("v_readfirstlane_b32 %s, v9" % sr(S_WAVE))
    e("v_lshrrev_b32 v11, 4, %s" % L)
    e("v_and_b32 v14, 31, %s" % L)
    e("v_lshlrev_b32 v14, 4, v14")
    e("v_lshl_add_u32 v14, v9, 17, v14")
    e("v_lshrrev_b32 v15, 5, %s" % L)
    e("v_lshl_add_u32 %s, v15, 15, v14" % vr(V_WQD))
    if CFG["xt"]:
        e("v_mul_u32_u24 v14, 48, v9")
        e("v_lshrrev_b32 v16, 3, %s" % L)
        e("v_add_u32 v14, v14, v16")
        e("v_mul_u32_u24 v14, 0x380, v14")
        e("v_and_b32 v16, 7, %s" % L)
        e("v_xor_b32 v16, v16, v11")
        e("v_lshl_add_u32 %s, v16, 4, v14" % vr(V_XO))
        e("v_xor_b32 %s, 64, %s" % (vr(V_XO + 1), vr(V_XO)))
        e("v_add_u32 %s, 0x%x, %s" % (vr(V_XO + 1), 8 * 896, vr(V_XO + 1)))
    else:
        e("v_mul_u32_u24 v14, 48, v9")
        e("v_add_u32 v14, v14, v10")
        e("v_mul_u32_u24 v14, 0x380, v14")
        e("v_lshl_add_u32 %s, v11, 4, v14" % vr(V_XO))
    e("s_mul_i32 %s, %s, %d" % (sr(S_M0V), sr(S_WAVE), 8 * VP))
    e("s_mov_b32 %s, %d" % (sr(S_XJ1), 16 * 896))
    e("s_mov_b32 %s, %d" % (sr(S_XJ2), 32 * 896))
    e("s_lshl_b32 s11, s8, 9")
    e("s_sub_u32 s12, 0x%x, s11" % (448 * 8192))
    e("s_mul_i32 s13, s7, %d" % 157696)
    e("s_waitcnt lgkmcnt(0)")
    e("s_cmp_eq_u32 s6, 1")
    e("s_cselect_b64 %s, s[32:33], s[22:23]" % sr(S_WQ, 2))
    e("s_cselect_b64 %s, s[26:27], s[16:17]" % sr(S_X, 2))
    e("s_cselect_b64 %s, s[28:29], s[18:19]" % sr(S_K, 2))
    e("s_cselect_b64 %s, s[30:31], s[20:21]" % sr(S_V, 2))
    e("s_cselect_b64 %s, s[34:35], s[24:25]" % sr(S_WO, 2))
    add64(g, S_WQ, "s11")
    srd(g, S_WQ, "s12")
    add64(g, S_X, "s13")
    srd(g, S_X, 157696)
    if CFG["xt"]:
        issue(g, x_loads(0, 3) + wq_dma(0) + x_loads(1, 3) + wq_dma(1) + x_loads(2, 3))
        e("v_mul_u32_u24 v14, 0x1800, v9")
        e("v_add_u32 v14, 0x%x, v14" % XBUF)
        e("v_lshl_add_u32 %s, %s, 4, v14" % (vr(V_XW), L))
        e("v_lshl_add_u32 v14, v10, 7, v14")
        e("v_lshrrev_b32 v16, 1, v10")
        e("v_xor_b32 v16, v16, v11")
        e("v_lshl_add_u32 %s, v16, 4, v14" % vr(V_XR))
        e("v_xor_b32 %s, 64, %s" % (vr(V_XR + 1), vr(V_XR)))
    else:
        issue(g, wq_dma(0) + x_loads(0, 3) + wq_dma(1) + x_loads(1, 3))
    if CFG["pfq"]:
        e("v_lshrrev_b32 v58, 2, v0")
        e("v_lshlrev_b32 v58, 16, v58")
        e("v_and_b32 v59, 3, v0")
        e("v_lshl_add_u32 v58, v59, 7, v58")
        e("s_lshl_b32 s11, s7, 13")
        e("v_and_b32 v59, 31, v0")
        e("v_mul_u32_u24 v60, 24, v9")
        e("v_add_u32 v59, v59, v60")
        e("v_mul_u32_u24 v59, 0x700, v59")
        e("v_lshl_add_u32 v59, v15, 7, v59")
        e("s_and_b32 s12, s5, 1")
        e("s_mul_i32 s12, s12, 896")
        for k in range(CFG["pfq"]):
            g.vmem("buffer_load_dword v61, v59, %s, s12 offen offset:%d" % (sr(S_X, 4), 256 + 64 * k) + pol("xpol"), "pf")
            g.vmem("buffer_load_dword v61, v58, %s, s11 offen offset:%d" % (sr(S_WQ, 4), 64 * k) + pol("wqpol"), "pf")
        for n in range(1, 3):
            for k in range(CFG["pfq"]):
                g.vmem("buffer_load_dword v61, v59, %s, s12 offen offset:%d" % (sr(S_X, 4), 256 + 256 * n + 64 * k) + pol("xpol"), "pf")
    if CFG["pf0"]:
        code_pf(g, CFG["pf0"], 32768, "v0", 56, 52, "L2_END", "0")
    e("v_lshrrev_b32 v12, 2, %s" % L)
    e("v_and_b32 v13, 3, %s" % L)
    e("v_mul_u32_u24 %s, 0x%x, v10" % (vr(V_KRD), KP))
    e("v_and_b32 v14, 1, v11")
    e("v_lshl_add_u32 %s, v14, 8, %s" % (vr(V_KRD), vr(V_KRD)))
    e("v_lshrrev_b32 v14, 1, v11")
    e("v_lshl_add_u32 %s, v14, 4, %s" % (vr(V_KRD), vr(V_KRD)))
    e("v_mul_u32_u24 v15, 0x%x, v12" % VP)
    e("v_lshl_add_u32 %s, v13, 3, v15" % vr(V_VRD))
    e("v_add_u32 %s, 0x%x, %s" % (vr(V_VRD), VS[0], vr(V_VRD)))
    e("v_and_b32 v14, 1, v13")
    e("v_lshl_add_u32 %s, v14, 8, v15" % vr(V_QLO))
    e("v_lshrrev_b32 v14, 1, v13")
    e("v_lshl_add_u32 %s, v14, 4, %s" % (vr(V_QLO), vr(V_QLO)))
    e("v_add_u32 %s, 0x%x, %s" % (vr(V_QHI), VS[0], vr(V_QLO)))
    e("v_lshlrev_b32 v14, 4, %s" % L)
    e("v_lshl_add_u32 %s, v9, 13, v14" % vr(V_D0))
    e("v_add_u32 %s, 0x1000, %s" % (vr(V_D1), vr(V_D0)))
    e("v_mul_u32_u24 v15, 0x%x, v9" % (3 * 14 * 16384))
    e("v_add_u32 %s, v15, v14" % vr(V_OST))
    e("v_lshrrev_b32 v14, 3, %s" % L)
    e("v_lshl_add_u32 v15, v9, 6, v14")
    e("v_mul_u32_u24 v15, 0x380, v15")
    e("v_and_b32 v14, 6, v14")
    e("v_and_b32 v16, 7, %s" % L)
    e("v_xor_b32 v14, v14, v16")
    e("v_lshl_add_u32 %s, v14, 4, v15" % vr(V_WOD))
    e("v_lshlrev_b32 v14, 7, v12")
    e("v_lshl_add_u32 v14, v13, 3, v14")
    e("v_bfe_u32 v15, v12, 1, 2")
    for E in range(4):
        e("v_xor_b32 v16, %d, v15" % E)
        e("v_lshl_add_u32 %s, v16, 5, v14" % vr(V_ELO + E))
    e("s_mul_i32 %s, %s, %d" % (sr(S_M0K), sr(S_WAVE), 8 * KP))
    e("s_lshl_b32 %s, %s, 13" % (sr(S_M0E), sr(S_WAVE)))
    e("s_mov_b32 %s, 0x%x" % (sr(S_THR), f32bits(CFG["thr"])))
    e("s_mov_b32 %s, 0x%x" % (sr(S_SC), f32bits(math.log2(math.e) / 16)))
    e("s_mov_b32 %s, %s" % (sr(S_SC + 1), sr(S_SC)))
    e("s_lshl_b32 s10, s7, 3")
    e("s_lshr_b32 s11, s8, 1")
    e("s_add_u32 s10, s10, s11")
    e("s_lshl_b32 s11, s7, 4")
    e("s_add_u32 s11, s11, s8")
    e("s_cmp_eq_u32 s6, 1")
    e("s_cselect_b32 s10, s11, s10")
    e("s_lshl_b32 s10, s10, 20")
    add64(g, S_K, "s10")
    srd(g, S_K, 1 << 20)
    add64(g, S_V, "s10")
    srd(g, S_V, 1 << 20)
    e("s_mul_i32 s12, s8, %d" % (256 * 896))
    add64(g, S_WO, "s12")
    srd(g, S_WO, 256 * 896)
    e("s_lshl_b32 s11, s6, 3")
    e("s_add_u32 s11, s11, s7")
    e("s_mul_i32 s11, s11, %d" % GRP)
    e("s_lshl_b32 s12, s8, 10")
    e("s_add_u32 s11, s11, s12")
    e("s_add_u32 s11, s11, 0x%x" % POFF)
    e("s_add_u32 %s, s40, s11" % sr(S_P))
    e("s_addc_u32 %s, s41, 0" % sr(S_P + 1))
    e("s_sub_u32 s12, %d, s12" % GRP)
    srd(g, S_P, "s12")
    if CFG["pfw"] or CFG["pfl"]:
        e("s_mul_i32 s70, s7, 28672")
        e("s_mul_i32 s11, %s, 7168" % sr(S_WAVE))
        e("s_add_u32 s70, s70, s11")
    e("s_mov_b32 %s, 0" % sr(S_KO))
    e("s_mov_b32 %s, 0" % sr(S_VO))
    if CFG["stamps"]:
        e("s_lshl_b32 s11, s2, 2")
        e("s_add_u32 s11, s11, %s" % sr(S_WAVE))
        e("s_lshl_b32 s11, s11, 8")
        e("s_add_u32 s11, s11, 0x%x" % STAMP_OFF)
        e("s_add_u32 %s, s40, s11" % sr(S_ST))
        e("s_addc_u32 %s, s41, 0" % sr(S_ST + 1))
        srd(g, S_ST, 256)
        e("v_lshlrev_b32 v0, 8, %s" % L)
        e("s_mov_b32 s91, 0")
        stamp(g, True)
    if CFG["xt"]:
        g.wait(vm_tags=["x0"])
        for s in x_turn(0, 3):
            g.ds(s, "xt")
    g.wait(vm_tags=["wq0", "x0"])
    e("s_barrier")
    stamp(g)
    if CFG["w3"]:
        e("s_cmp_eq_u32 %s, 3" % sr(S_WAVE))
        e("s_cbranch_scc1 L1_W3")
        st = (list(g.vm), list(g.lg))
        body1(g, 3, "")
        g.vm, g.lg = st
        g.out.append(".p2align 6")
        g.lab("L1_W3")
        body1(g, 2, "_W3")
    else:
        body1(g, 3, "")
    if CFG["verbose"]:
        print("nops", g.nops)
    return g.out


def body1(g, nq, sx):
    e = g.e
    gpg = 2 * nq
    W = [w_groups(t, nq) for t in range(7)]
    QK0 = k_groups(0, 0, nq, zero_kb=(0, 1))
    issue_first(g, W[0], "W0")

    def adv(r):
        return "s_add_u32 %s, %s, 0x8000" % (sr(r), sr(r))
    wd = [wq_dma(2) + x_loads(2, nq) + wq_dma(3), x_loads(3, nq) + wq_dma(4), x_loads(4, nq) + wq_dma(5),
          x_loads(5, nq) + wq_dma(6), x_loads(6, nq) + kv_dma("K", 0, "K0"), kv_dma("K", 1, "K1"),
          kv_dma("V", 0, "V0")]
    if CFG["xt"]:
        wd = [wq_dma(2) + x_loads(3, nq) + wq_dma(3), x_loads(4, nq) + wq_dma(4), x_loads(5, nq) + wq_dma(5),
              x_loads(6, nq) + wq_dma(6), kv_dma("K", 0, "K0"), kv_dma("K", 1, "K1"), kv_dma("V", 0, "V0")]
    if CFG["pfwat"] >= 2:
        pw = [(["v_lshlrev_b32 v44, 7, %s" % vr(V_LANE)] if k == 0 else [],
               "buffer_load_dword a191, v44, %s, s70 offen offset:%d" % (sr(S_WO, 4), 64 * k) + pol("pfpol"), "pf")
              for k in range(CFG["pfw"])]
        t = CFG["pfwat"] // 2
        wd[t] = wd[t] + pw if CFG["pfwat"] & 1 else pw + wd[t]
    wt = [(), (), (), (), [adv(S_KO)], [adv(S_KO)], [adv(S_VO)]]
    for t in range(7):
        if t < 6:
            phase(g, "W%d" % t, W[t], W[t + 1], "W%d" % (t + 1), ["wq%d" % (t + 1), "x%d" % (t + 1)], nq,
                  dmas=wd[t], tail=wt[t], dmaend=CFG["w5end"] if t == 5 else 15, xt=t + 1 if CFG["xt"] else None)
            if CFG["wstamps"]:
                stamp(g)
        else:
            phase(g, "W6", W[6], QK0, "Q0", ["K0"], nq, dmas=wd[t], tail=wt[t], dmaend=15)
    stamp(g)
    g.c("convert Q")
    for f in range(8 * nq):
        a = V_ACC + 8 * f
        for k in range(4):
            e("v_pk_mul_f32 %s, %s, %s" % (vr(a + 2 * k, 2), vr(a + 2 * k, 2), sr(S_SC, 2)))
        for k in range(4):
            d = V_Q + 4 * f + k if f < 16 else a + k
            e("v_cvt_pk_bf16_f32 %s, %s, %s" % (vr(d), vr(a + 2 * k), vr(a + 2 * k + 1)))
        if f >= 16:
            for k in range(4):
                e("v_accvgpr_write_b32 %s, %s" % (ar(A_Q + 4 * (f - 16) + k), vr(a + k)))
    stamp(g)
    QKe = k_groups(0, 0, nq)
    QKo = k_groups(1, 1, nq)
    PVe = v_groups(0, 0, nq)
    PVo = v_groups(1, 1, nq)
    A0, B0 = sm_split(0, nq)
    A1, B1 = sm_split(1, nq)
    ref = []
    for j in range(nq):
        t, u = V_X + 2 * j, V_X + 2 * j + 1
        s0 = Sreg(0, 0, j)
        lo = 3 * gpg + 2 * j + 1 + 5
        ops = ["v_max3_f32 %s, %s, %s, %s" % (vr(t), vr(s0), vr(s0 + 1), vr(s0 + 2)),
               "v_max_f32 %s, %s, %s" % (vr(t), vr(t), vr(s0 + 3))] + xlane(t, u, "v_max_f32")
        ops += ["v_sub_f32 %s, 0, %s" % (vr(V_NEGM + 4 * j + r), vr(t)) for r in range(4)]
        ref.append([F(s, lo=lo, hi=8 * gpg + 2 * j - 3) for s in ops])
    fill = [F("v_mov_b32 %s, 0" % vr(V_L + j)) for j in range(nq)] + interleave(ref)
    for j in range(nq):
        for kb in range(2):
            for r in range(4):
                x = vr(Sreg(0, kb, j) + r)
                fill.append(F("v_add_f32 %s, %s, %s" % (x, x, vr(V_NEGM + 4 * j)), lo=7 * gpg + 2 * j + 6 if kb else 0))
    phase(g, "Q0", QK0, QKo, "Q1", ["K1"], nq, fill=fill + A0, dmas=kv_dma("V", 1, "V1"), tail=[adv(S_VO)],
          greedy=True, dmaend=4)
    stamp(g)
    PV0 = v_groups(0, 0, nq, first=True)

    backs = []

    def ret(n):
        return "s_mov_b32 %s, %d" % (sr(S_RET), n)

    def fork(n, p, z=False):
        e("s_cbranch_vccnz L1_RARE%d%s" % (p, sx))
        g.lab("L1_BACK%d%s" % (n, sx))
        backs.append((n, "L1_BACK%d%s" % (n, sx), p, z))

    def chk(B):
        r = B + check_ops(nq)
        r[-1].hi = 16 * gpg - 2
        return r
    phase(g, "Q1", QKo, PV0, "P0", ["V0"], nq, fill=chk(B0), dmas=kv_dma("K", 0, "K0"), tail=[adv(S_KO), ret(0)])
    fork(0, 0)
    pw = [(["v_lshlrev_b32 v254, 7, %s" % vr(V_LANE)] if k == 0 else [],
           "buffer_load_dword v255, v254, %s, s70 offen offset:%d" % (sr(S_WO, 4), 64 * k) + pol("pfpol"), "pf") for k in range(CFG["pfw"])]
    phase(g, "P0", PV0, QKe, "Qe", ["K0"], nq, fill=l_adds(nq) + A1, dmas=(pw if CFG["pfwat"] == 0 else []) + kv_dma("K", 1, "K1"),
          tail=[adv(S_KO), "s_mov_b32 %s, 14" % sr(S_CNT)])
    stamp(g)
    pl = [[], [], [], [], []]
    if CFG["pfl"]:
        e("v_lshlrev_b32 v253, 3, %s" % vr(V_LANE))
        e("s_sub_u32 s70, s70, 512")
        pl[CFG["pfl"]] = [(["s_add_u32 s70, s70, 512"],
                           "buffer_load_dwordx2 v[254:255], v253, %s, s70 offen" % sr(S_WO, 4) + pol("pfpol"), "pf")]
    if CFG["pfl2"]:
        pl[CFG["pfl2"]] = [([], "buffer_load_dwordx2 v[254:255], v253, %s, s70 offen" % sr(S_WO, 4), "pf")]
    g.vm = ["V1"] * 8 + ["pf"] * len(pl[4]) + ["K1"] * 8 + (["st"] if CFG["stamps"] else [])
    head_vm, head_lg = list(g.vm), list(g.lg)
    nd = CFG["nodmai"] and nq == 3
    g.out.append(".p2align 6")
    g.lab("L1_LOOP" + sx)
    phase(g, "Qe", QKe, PVo, "Po", ["V1"], nq, fill=chk(B1), dmas=pl[1] + kv_dma("V", 0, "V0"), tail=[adv(S_VO), ret(1)], nodma=nd, dry=CFG["dry"], inloop=True)
    fork(1, 1)
    phase(g, "Po", PVo, QKo, "Qo", ["K1"], nq, fill=l_adds(nq) + A0, dmas=pl[2] + kv_dma("K", 0, "K0"), tail=[adv(S_KO)],
          nodma=nd, dry=CFG["dry"], inloop=True)
    phase(g, "Qo", QKo, PVe, "Pe", ["V0"], nq, fill=chk(B0), dmas=pl[3] + kv_dma("V", 1, "V1"), tail=[adv(S_VO), ret(2)], nodma=nd, dry=CFG["dry"], inloop=True)
    fork(2, 0)
    phase(g, "Pe", PVe, QKe, "Qe", ["K0"], nq, fill=l_adds(nq) + A1, dmas=pl[4] + kv_dma("K", 1, "K1"),
          tail=[adv(S_KO), "s_sub_u32 %s, %s, 1" % (sr(S_CNT), sr(S_CNT)), "s_cmp_lg_u32 %s, 0" % sr(S_CNT)],
          nodma=nd, dry=CFG["dry"], inloop=True)
    if CFG["stamps"]:
        stamp(g)
        e("s_cmp_lg_u32 %s, 0" % sr(S_CNT))
    e("s_cbranch_scc1 L1_LOOP" + sx)
    assert g.vm == head_vm, (g.vm, head_vm)
    assert g.lg == head_lg, (g.lg, head_lg)
    if CFG["pf1"]:
        code_pf(g, CFG["pf1"], 8192, vr(V_LANE), 244, 252, "L1_FIN" + sx, "1" + sx)
    vl = CFG["vlast"]
    if vl:
        ER[:] = [131072, 65536, 98304, 0, 32768, 131072, 65536]
    PVz = v_groups(2 if vl else 1, 1, nq, z=True)
    E = [e_groups(c, nq) for c in range(7)]
    phase(g, "Qe", QKe, PVo, "Po", ["V1"], nq, fill=chk(B1), dmas=(pw if CFG["pfwat"] == 1 else []) + kv_dma("V", 0, "V0"),
          tail=[adv(S_VO), ret(3)])
    fork(3, 1)
    if CFG["pstamps"]:
        stamp(g)
    vz = [F("v_add_u32 %s, 0x%x, %s" % (vr(V_VZ), (1 << 32) - VS[0], vr(V_VRD)))] if vl else []
    phase(g, "Po", PVo, QKo, "Qo", ["K1"], nq, fill=l_adds(nq) + A0 + vz,
          dmas=(kv_dma("V", 2, "V1") if vl else wo_dma(0)) + (pw if CFG["pfwat"] == -1 else []))
    if CFG["pstamps"]:
        stamp(g)
    phase(g, "Qo", QKo, PVe, "Pe", ["V0"], nq, fill=chk(B0), dmas=wo_dma(0) if vl else kv_dma("V", 1, "V1"), tail=[ret(4)],
          dmaend=CFG["vzend"])
    fork(4, 0)
    if CFG["pstamps"]:
        stamp(g)
    phase(g, "Pe", PVe, PVz, "Pz", ["V1"], nq, fill=l_adds(nq) + chk(sm_all(1, nq, True)), dmas=() if vl else wo_dma(1),
          tail=[ret(5)])
    fork(5, 1, True)
    stamp(g)

    def conv(m, j, lo=0, hi=None):
        t = V_T + 4 * ((m * nq + j) & 1) if False else V_T
        r = []
        for hh in range(2):
            for q in range(4):
                r.append(F("v_accvgpr_read_b32 %s, %s" % (vr(t + 4 * hh + q), ar(Oreg(2 * m + hh, j) + q)), lo=lo, hi=hi))
            for q in range(2):
                r.append(F("v_cvt_pk_bf16_f32 %s, %s, %s" % (
                    vr(Breg(m, j) + 2 * hh + q), vr(t + 4 * hh + 2 * q), vr(t + 4 * hh + 2 * q + 1)), lo=lo, hi=hi))
        return r
    fill = [F("v_add_u32 %s, 0x%x, %s" % (vr(V_EHI + x), 65536, vr(V_ELO + x))) for x in range(4)]
    eh2 = [F("v_add_u32 %s, 0x%x, %s" % (vr(V_EH2 + x), 131072, vr(V_ELO + x)), hi=8 * gpg) for x in range(4)]
    if vl:
        for f in fill:
            f.hi = 8 * gpg
    else:
        fill += eh2
        eh2 = []
    fill += [F("v_add_u32 %s, 0x%x, %s" % (vr(V_OS1 + x), (x + 1) * 14 * 16384, vr(V_OST))) for x in range(2)]
    fill += l_adds(nq)
    fill += [F(s) for s in interleave([xlane(V_L + j, V_TS + j, "v_add_f32") for j in range(nq)])]
    fill += [F("v_rcp_f32 %s, %s" % (vr(V_L + j), vr(V_L + j)), 2) for j in range(nq)]
    misc = fill
    fill = eh2
    MZ = CFG["mz"]
    for m in range(MZ):
        for j in range(nq):
            fill += conv(m, j, lo=(2 * m + 1) * gpg + 2 * j + 1 + 5)
    phase(g, "Pz", PVz, E[0], "E0", ["c0"], nq, fill=fill, dmas=(wo_dma(1) if vl else []) + wo_dma(2), dmaend=15)
    stamp(g)

    def outs(c, late=False):
        r = []
        for x in range(2):
            st = S_T2 + x if c else S_XJ1 + x
            r.append(F("s_mov_b32 %s, 0x%x" % (sr(st), 0 if CFG["stsame"] else (2 * c + x) * 16384), 0))
            for j in range(nq):
                a, b = EACC[c & 1][2 * x * 3 + j], EACC[c & 1][(2 * x + 1) * 3 + j]
                pk = a if c else V_PK0 + 4 * (x * 3 + j)
                lo = ((8 * x + 7) * gpg + 2 * j + 1 + 5) if late else 3
                for y in (a, b):
                    for q in range(4):
                        r.append(F("v_mul_f32 %s, %s, %s" % (vr(y + q), vr(y + q), vr(V_L + j)), lo=lo))
                for n, y in enumerate((a, a + 2, b, b + 2)):
                    r.append(F("v_cvt_pk_bf16_f32 %s, %s, %s" % (vr(pk + n), vr(y), vr(y + 1)), lo=lo))
                va = V_OST if j == 0 else V_OS1 + j - 1
                r.append(F("buffer_store_dwordx4 %s, %s, %s, %s offen%s" % (
                    vr(pk, 4), vr(va), sr(S_P, 4), sr(st), pol("stpol")), 2, tag="po"))
        return r
    held = []
    for c in range(7):
        if c == 0:
            fill = []
            for m in range(MZ, 8):
                for j in range(nq):
                    fill += conv(m, j, lo=6 if m == 7 else 0, hi=(m >> 1) * 4 * gpg + 2 * j - 3)
            fill += misc
        else:
            fill = outs(c - 1)
        if c == 1:
            held = [f for f in fill if f.tag]
            fill = [f for f in fill if not f.tag]
        if c == 2:
            for n, f in enumerate(held):
                f.lo = 3 * gpg + 3 * n
            fill = held + fill
        last = []
        if c == 6:
            o = outs(6, True)
            h = len(o) // 2
            for f in fill:
                f.hi = 8 * gpg
            fill += o[:h]
            last = o[h:]
        dm = [wo_dma(3) + wo_dma(4), wo_dma(5), wo_dma(6), (), (), (), ()][c]
        phase(g, "E%d" % c, E[c], E[c + 1] if c < 6 else None, "E%d" % (c + 1), ["c%d" % (c + 1)], nq,
              fill=fill, dmas=dm, dmaend=[15, 15, 3, 0, 0, 0, 0][c], greedy=(c == 0), dense=(c == 2), nodma=CFG["nowo"])
        if CFG["estamps"]:
            stamp(g)
    g.c("last stores")
    for f in last:
        if f.tag:
            g.vmem(f.text, f.tag)
        else:
            e(f.text)
    stamp(g)
    if not sx:
        g.lab("L1_END")
    g.lab("L1_FIN" + sx)
    e("s_endpgm")
    rare(g, sx, nq, backs)


def kernel2():
    g = G()
    e = g.e
    g.lab(K2)
    if CFG["stamps"]:
        e("s_memtime s[96:97]")
        e("s_memrealtime s[98:99]")
    e("s_cmp_ge_u32 s2, 616")
    e("s_cbranch_scc1 L2_END")
    e("s_load_dwordx2 s[20:21], s[0:1], 80")
    e("s_load_dwordx2 s[22:23], s[0:1], 96")
    e("v_lshrrev_b32 v2, 6, v0")
    e("v_and_b32 v1, 63, v0")
    e("v_readfirstlane_b32 s3, v2")
    e("s_lshl_b32 s4, s2, 2")
    e("s_add_u32 s4, s4, s3")
    e("v_lshlrev_b32 v3, 4, v1")
    e("s_lshl_b32 s24, s4, 14")
    e("s_add_u32 s24, s24, 0x%x" % POFF)
    e("s_mov_b32 s30, 0x1000")
    e("s_mov_b32 s31, 0x2000")
    e("s_mov_b32 s32, 0x3000")
    srd(g, 8, 16384)
    e("s_waitcnt lgkmcnt(0)")
    e("s_add_u32 s8, s22, s24")
    e("s_addc_u32 s9, s23, 0")
    for h in range(16):
        g.vmem("buffer_load_dwordx4 %s, v3, s[8:11], %s offen offset:%d%s" % (
            vr(16 + 4 * h, 4), ["0", "s30", "s31", "s32"][h >> 2], (h & 3) * 1024, pol("k3pol")), h)
    if CFG["stamps"]:
        e("s_lshl_b32 s91, s4, 8")
        e("s_add_u32 s91, s91, 0x%x" % (STAMP_OFF + 1024 * 256))
        e("s_add_u32 %s, s22, s91" % sr(S_ST))
        e("s_addc_u32 %s, s23, 0" % sr(S_ST + 1))
        srd(g, S_ST, 256)
        e("v_lshlrev_b32 v0, 8, v1")
        e("s_mov_b32 s91, 0")
        stamp(g, True)
    e("s_mul_i32 s5, s4, 4682")
    e("s_lshr_b32 s5, s5, 16")
    e("s_mul_i32 s6, s5, 14")
    e("s_sub_u32 s6, s4, s6")
    e("s_cmp_ge_u32 s5, 88")
    e("s_cselect_b32 s7, 1, 0")
    e("s_mul_i32 s24, s7, 88")
    e("s_sub_u32 s5, s5, s24")
    e("s_mul_i32 s24, s5, %d" % (16 * 1792))
    e("s_mul_i32 s26, s7, 896")
    e("s_add_u32 s24, s24, s26")
    e("s_lshl_b32 s26, s6, 6")
    e("s_add_u32 s24, s24, s26")
    e("s_add_u32 s12, s20, s24")
    e("s_addc_u32 s13, s21, 0")
    e("s_sub_u32 s26, %d, s24" % (1408 * 1792))
    srd(g, 12, "s26")
    e("v_and_b32 v4, 15, v1")
    e("v_mul_u32_u24 v4, 0x700, v4")
    e("v_lshrrev_b32 v5, 4, v1")
    e("v_lshl_add_u32 v4, v5, 3, v4")
    e("s_mov_b32 s33, 0xffff0000")
    for h in range(16):
        g.wait(vm_tags=[h])
        if h == 0:
            stamp(g)
        for r in range(4):
            x = 16 + 4 * h + r
            if h == 0:
                e("v_lshlrev_b32 v%d, 16, v%d" % (6 + 2 * r, x))
                e("v_and_b32 v%d, s33, v%d" % (7 + 2 * r, x))
            else:
                e("v_lshlrev_b32 v80, 16, v%d" % x)
                e("v_and_b32 v81, s33, v%d" % x)
                e("v_add_f32 v%d, v%d, v80" % (6 + 2 * r, 6 + 2 * r))
                e("v_add_f32 v%d, v%d, v81" % (7 + 2 * r, 7 + 2 * r))
    for r in range(4):
        e("v_cvt_pk_bf16_f32 v%d, v%d, v%d" % (16 + r, 6 + 2 * r, 7 + 2 * r))
    stamp(g)
    e("buffer_store_dwordx2 v[16:17], v4, s[12:15], 0 offen")
    e("buffer_store_dwordx2 v[18:19], v4, s[12:15], 0 offen offset:32")
    stamp(g)
    g.lab("L2_END")
    e("s_endpgm")
    return g.out


def desc(name, nv, acc):
    return [".p2align 6", ".amdhsa_kernel " + name,
            "  .amdhsa_next_free_vgpr %d" % nv,
            "  .amdhsa_next_free_sgpr 102",
            "  .amdhsa_accum_offset %d" % acc,
            "  .amdhsa_group_segment_fixed_size 0",
            "  .amdhsa_kernarg_size 104",
            "  .amdhsa_user_sgpr_count 2",
            "  .amdhsa_user_sgpr_kernarg_segment_ptr 1",
            "  .amdhsa_system_sgpr_workgroup_id_x 1",
            ".end_amdhsa_kernel"]


def build():
    ref = open("cdna_kernels/%s.s.ref" % NAME).read().split("\n")
    head = []
    for ln in ref:
        if ln.startswith("; Override") or ln.startswith("; grid=") or ln.startswith("; @launch"):
            continue
        if not ln.startswith(";"):
            break
        head.append(ln)
    out = head + [
        "; @launch kernel=%s grid=(256,1,1) block=(256,1,1) lds=%d" % (K1, LDS1),
        "; @launch kernel=%s grid=(616,1,1) block=(256,1,1) lds=0" % K2,
        '.amdgcn_target "amdgcn-amd-amdhsa--gfx950"', ".text"]
    for name, body in ((K1, kernel1()), (K2, kernel2())):
        out += [".globl " + name, ".p2align 8", ".type %s,@function" % name] + body
    out += ['.section .rodata,"a"'] + desc(K1, 512, 256) + desc(K2, 84, 84)
    return "\n".join(out) + "\n"


if __name__ == "__main__":
    path = "cdna_kernels/%s.s" % NAME
    for a in sys.argv[1:]:
        if "=" in a:
            k, v = a.split("=")
            CFG[k] = v if isinstance(CFG[k], str) else type(CFG[k])(eval(v))
        else:
            path = a
    open(path, "w").write(build())
    print("wrote", path)
```
